```python
import torch

def _softmax(x, axis=-1):
    return torch.softmax(x, dim=axis)
def _gelu(x):
    return torch.nn.functional.gelu(x, approximate="tanh")
def _silu(x):
    return torch.nn.functional.silu(x)
def _sigmoid(x):
    return torch.sigmoid(x)
def _layernorm(x, axis=-1, eps=1e-5):
    m = x.mean(dim=axis, keepdim=True)
    v = x.var(dim=axis, keepdim=True, unbiased=False)
    return (x - m) / torch.sqrt(v + eps)
def _scatter_add(tgt, idx, src, axis=0):
    return tgt.clone().index_add_(axis, idx, src)
def _segment_sum(src, seg, n):
    out = torch.zeros((n,) + src.shape[1:], dtype=src.dtype)
    return out.index_add_(0, seg, src)
def _pad(x, pw):
    flat = tuple(v for pair in reversed(pw) for v in pair)
    return torch.nn.functional.pad(x, flat)

kernel_name = 'concat_heads__mha_block_cached__mha_block_cached__near_ridge'

def setup_inputs():

    _w = (lambda a: (lambda t: t.to(torch.bfloat16) if t.is_floating_point() else t)(torch.as_tensor(a)))
    def _A_setup():
        B, Sq, D = 32, 32, 576
        H, Sk, Dh = 32, 32, 128
        return {
            "x": _w((lambda *s: torch.randn(*s, dtype=torch.bfloat16) * 0.8)(B, Sq, D)),
            "k_cache": _w((lambda *s: torch.randn(*s, dtype=torch.bfloat16) * 0.8)(B, H, Sk, Dh)),
            "v_cache": _w((lambda *s: torch.randn(*s, dtype=torch.bfloat16) * 0.05)(B, H, Sk, Dh)),
            "wq": _w((lambda *s: torch.randn(*s, dtype=torch.bfloat16) * 0.8)(D, H * Dh) * (D ** -0.5)),
            "wo": _w((lambda *s: torch.randn(*s, dtype=torch.bfloat16) * 0.05)(H * Dh, D) * ((H * Dh) ** -0.5)),
        }
    _A_in = _A_setup()

    def _B_setup():
        B, Sq, D = 32, 32, 576
        H, Sk, Dh = 32, 32, 128
        return {
            "x": _w((lambda *s: torch.randn(*s, dtype=torch.bfloat16) * 0.8)(B, Sq, D)),
            "k_cache": _w((lambda *s: torch.randn(*s, dtype=torch.bfloat16) * 0.8)(B, H, Sk, Dh)),
            "v_cache": _w((lambda *s: torch.randn(*s, dtype=torch.bfloat16) * 0.05)(B, H, Sk, Dh)),
            "wq": _w((lambda *s: torch.randn(*s, dtype=torch.bfloat16) * 0.8)(D, H * Dh) * (D ** -0.5)),
            "wo": _w((lambda *s: torch.randn(*s, dtype=torch.bfloat16) * 0.05)(H * Dh, D) * ((H * Dh) ** -0.5)),
        }
    _B_in = _B_setup()

    return {
        "A_x": _A_in["x"],
        "A_k_cache": _A_in["k_cache"],
        "A_v_cache": _A_in["v_cache"],
        "A_wq": _A_in["wq"],
        "A_wo": _A_in["wo"],
        "B_x": _B_in["x"],
        "B_k_cache": _B_in["k_cache"],
        "B_v_cache": _B_in["v_cache"],
        "B_wq": _B_in["wq"],
        "B_wo": _B_in["wo"],
    }

def reference(A_x, A_k_cache, A_v_cache, A_wq, A_wo, B_x, B_k_cache, B_v_cache, B_wq, B_wo):
    def _A_ref(x, k_cache, v_cache, wq, wo):
        B, Sq, D = x.shape
        H, Dh = 32, 128
        q = (lambda x, *d: x.permute(*d))((x @ wq).reshape(B, Sq, H, Dh), 0, 2, 1, 3)
        scores = torch.einsum("bhqd,bhkd->bhqk", q, k_cache) * (Dh ** -0.5)
        p = _softmax(scores, axis=-1)
        o = torch.einsum("bhqk,bhkd->bhqd", p, v_cache)
        return (lambda x, *d: x.permute(*d))(o, 0, 2, 1, 3).reshape(B, Sq, H * Dh) @ wo

    def _B_ref(x, k_cache, v_cache, wq, wo):
        B, Sq, D = x.shape
        H, Dh = 32, 128
        q = (lambda x, *d: x.permute(*d))((x @ wq).reshape(B, Sq, H, Dh), 0, 2, 1, 3)
        scores = torch.einsum("bhqd,bhkd->bhqk", q, k_cache) * (Dh ** -0.5)
        p = _softmax(scores, axis=-1)
        o = torch.einsum("bhqk,bhkd->bhqd", p, v_cache)
        return (lambda x, *d: x.permute(*d))(o, 0, 2, 1, 3).reshape(B, Sq, H * Dh) @ wo

    a = _A_ref(A_x, A_k_cache, A_v_cache, A_wq, A_wo)
    b = _B_ref(B_x, B_k_cache, B_v_cache, B_wq, B_wo)
    return torch.concatenate([a, b], axis=-1)
```

```python
import re

def regs_of(op):
    op = op.strip()
    op = re.sub(r'^-', '', op)
    m = re.match(r'^abs\((.*)\)$', op)
    if m: op = m.group(1)
    m = re.match(r'^([vsa])\[(\d+):(\d+)\]$', op)
    if m: return [f"{m.group(1)}{i}" for i in range(int(m.group(2)), int(m.group(3)) + 1)]
    m = re.match(r'^([vsa])(\d+)$', op)
    if m: return [op]
    if op in ('vcc', 'vcc_lo', 'vcc_hi'): return ['vcc']
    if op in ('exec', 'exec_lo', 'exec_hi'): return ['exec']
    if op == 'm0': return ['m0']
    return []

TRANS = ('v_exp_f32', 'v_log_f32', 'v_rcp_f32', 'v_rsq_f32', 'v_sqrt_f32', 'v_sin_f32', 'v_cos_f32')

class Ins:
    def __init__(self, text):
        self.text = text
        t = text.split(';')[0].strip()
        self.label = t.endswith(':')
        self.mn = '' if self.label or not t else t.split()[0]
        rest = t[len(self.mn):].strip() if self.mn else ''
        ops = [o.strip() for o in rest.split(',')] if rest else []
        clean = []
        for o in ops:
            clean.append(o.split()[0] if o else o)
        self.flags = rest.split()
        mn = self.mn
        self.w = []; self.r = []; self.kind = 'other'; self.passes = 0; self.srcC = []; self.srcAB = []
        self.states = 1
        if mn == 's_nop':
            self.states = int(ops[0], 0) + 1; self.kind = 'nop'
        elif self.label or not mn or mn.startswith('.'):
            self.states = 0; self.kind = 'label'
        elif mn.startswith('v_mfma'):
            self.kind = 'mfma'
            self.passes = 8 if '32x32x16' in mn else 4
            self.w = regs_of(clean[0]); self.srcAB = regs_of(clean[1]) + regs_of(clean[2]); self.srcC = regs_of(clean[3])
            self.r = self.srcAB + self.srcC
        elif mn.startswith('v_'):
            self.kind = 'valu'
            if mn.startswith('v_permlane') and 'swap' in mn:
                self.w = regs_of(clean[0]) + regs_of(clean[1]); self.r = list(self.w); self.kind2 = 'perm'
            elif mn.startswith(('v_add_co', 'v_addc_co', 'v_sub_co')):
                self.w = regs_of(clean[0]) + regs_of(clean[1]); self.r = sum((regs_of(o) for o in clean[2:]), [])
            else:
                self.w = regs_of(clean[0]); self.r = sum((regs_of(o) for o in clean[1:]), [])
                if mn.startswith(('v_fmac', 'v_dot2c')): self.r += self.w
                if mn.startswith('v_cndmask') and len(clean) == 3: self.r.append('vcc')
        elif mn.startswith('ds_read'):
            self.kind = 'ds'; self.w = regs_of(clean[0]); self.r = regs_of(clean[1])
        elif mn.startswith('ds_'):
            self.kind = 'ds'; self.r = sum((regs_of(o) for o in clean), [])
        elif mn.startswith('global_load'):
            self.kind = 'vmem'; self.w = regs_of(clean[0]); self.r = regs_of(clean[1])
        elif mn.startswith('buffer_'):
            self.kind = 'vmem'
            self.lds = 'lds' in self.flags
            if mn.startswith('buffer_load') and not self.lds:
                self.w = regs_of(clean[0]); self.r = sum((regs_of(o) for o in clean[1:]), [])
            else:
                self.r = sum((regs_of(o) for o in clean), [])
                if self.lds: self.r.append('m0')
            self.wide_store = mn in ('buffer_store_dwordx4', 'buffer_store_dwordx3')
            self.sdata = regs_of(clean[0]) if self.wide_store else []
        elif mn.startswith('s_'):
            self.kind = 'salu'
            if mn.startswith(('s_cmp', 's_waitcnt', 's_barrier', 's_cbranch', 's_branch', 's_sleep', 's_endpgm', 's_setprio', 's_setpc')):
                self.r = sum((regs_of(o) for o in clean), [])
                if mn.startswith(('s_waitcnt', 's_barrier', 's_sleep', 's_endpgm', 's_setprio', 's_branch', 's_cbranch')): self.r = []
            else:
                self.w = regs_of(clean[0]); self.r = sum((regs_of(o) for o in clean[1:]), [])

def need(prod, cons):
    n = 0
    pw, cr, cw = set(prod.w), set(cons.r), set(cons.w)
    if prod.kind == 'valu':
        vw = {x for x in pw if x[0] in 'va' and x != 'vcc'}
        sw = {x for x in pw if x[0] == 's' or x == 'vcc'}
        if cons.kind == 'mfma' and vw & cr: n = max(n, 2)
        if cons.kind == 'valu':
            if cons.mn.startswith('v_permlane') and vw & cr: n = max(n, 2)
            if cons.mn.startswith(('v_readfirstlane', 'v_readlane')) and vw & cr: n = max(n, 1)
            if prod.mn.replace('_e32', '').replace('_e64', '') in TRANS and vw & cr: n = max(n, 1)
            if sw & cr: n = max(n, 2)
            if 'dpp' in cons.text or 'row_' in cons.text or 'quad_perm' in cons.text:
                if vw & cr: n = max(n, 2)
        if cons.kind == 'vmem' and sw & cr: n = max(n, 5)
        if 'exec' in pw and cons.kind in ('mfma', 'valu'): n = max(n, 5)
    if prod.kind == 'mfma':
        big = prod.passes == 8
        if cons.kind in ('valu', 'vmem', 'ds') and pw & (cr | cw): n = max(n, 12 if big else 8)
        if cons.kind == 'mfma':
            if pw & set(cons.srcAB): n = max(n, 12 if big else 8)
            if pw & set(cons.srcC):
                if not (prod.w == cons.srcC and prod.passes == cons.passes): n = max(n, 10 if big else 6)
            elif pw & cw and not cons.srcC:
                n = max(n, 12 if big else 8)
        if cons.kind == 'valu' and set(prod.srcC) & cw: n = max(n, 7 if big else 3)
    if prod.kind == 'salu' and 'm0' in pw and cons.kind == 'vmem' and 'm0' in cr: n = max(n, 1)
    if prod.kind == 'vmem' and getattr(prod, 'wide_store', False) and set(prod.sdata) & cw:
        n = max(n, 2)
    return n

def insert_nops(lines):
    ins = [Ins(l) for l in lines]
    out = []
    added = 0
    for c in ins:
        if c.kind != 'label':
            dist = 0; req = 0
            for p in reversed(out):
                if dist >= 20: break
                k = need(p, c)
                if k > dist: req = max(req, k - dist)
                dist += p.states
            while req > 0:
                k = min(req, 16)
                out.append(Ins(f"s_nop {k-1}")); req -= k; added += 1
        out.append(c)
    return [i.text for i in out], added

class Q:
    def __init__(self, name, mx):
        self.name = name; self.mx = mx; self.n = 0; self.tags = {}; self.done = -1
    def issue(self, tag=None):
        if tag is not None: self.tags[tag] = self.n
        self.n += 1
    def wait_val(self, tag):
        idx = self.tags[tag]
        if idx <= self.done: return None
        v = self.n - 1 - idx
        v = min(v, self.mx)
        self.done = self.n - 1 - v
        return v
    def drain(self):
        self.done = self.n - 1

class E:
    def __init__(self):
        self.L = []
        self.vm = Q('vmcnt', 63); self.lg = Q('lgkmcnt', 15)
    def __call__(self, s):
        for l in s.split('\n'):
            l = l.strip()
            if l: self.L.append(l)
    def ds(self, s, tag=None):
        self(s); self.lg.issue(tag)
    def vmem(self, s, tag=None):
        self(s); self.vm.issue(tag)
    def wait(self, vm=None, lg=None):
        parts = []
        if vm is not None:
            v = self.vm.wait_val(vm)
            if v is not None: parts.append(f"vmcnt({v})")
        if lg is not None:
            v = self.lg.wait_val(lg)
            if v is not None: parts.append(f"lgkmcnt({v})")
        if parts: self("s_waitcnt " + " ".join(parts))
    def wait0(self, vm=False, lg=False):
        parts = []
        if vm: parts.append("vmcnt(0)"); self.vm.drain()
        if lg: parts.append("lgkmcnt(0)"); self.lg.drain()
        self("s_waitcnt " + " ".join(parts))
```

```python
import sys, copy
from asmlib import E, insert_nops

NAME = "concat_heads__mha_block_cached__mha_block_cached__near_ridge"

class Cfg:
    pol_x = ""; pol_wq = ""; pol_k = "nt"; pol_v = ""; pol_wo = ""; pol_wot = ""
    bursts = [2, 6, 12, 16]
    nstag = 2; sstep = 2
    t_split = 3; t0_at = 10; t_lead = 3; t1_at = 20
    wo0_at = 14
    pl_at = [0, 20, 38]
    rot = True
    hsleep = 1
    dist = 6
    flag_at = 3; poll_at = 9; check_at = 13
    free_ds = 16
    freerun = False; rotk = 0
    diag = False; pts = None; dbgout = None; clk = False; fine = False; nodma = False
    ws_o = 0; ws_p = 16 << 20; ws_f = 32 << 20; ws_e = 40 << 20; ws_t = 41 << 20; ws_s = 48 << 20

KB = 1024
WS_ = [0, 32*KB, 80*KB, 48*KB, 64*KB, 112*KB]
XS_ = [16*KB, 96*KB, 128*KB]
FULLA, FREEA, FREEB = 144*KB, 145*KB, 146*KB
KR, KR1, VR = 80*KB, 48*KB, 112*KB
WOS = [0, 36*KB, 72*KB]
LDS_BYTES = 163840
HORD = [(0, 0), (0, 1), (1, 0), (1, 1), (2, 0), (2, 1), (3, 0), (3, 1)]
NTO = [8, 2, 3, 4, 5, 6, 7, 0, 1]

sW, sBLK, sKG, sBG, sHP, sWL, sB = 4, 5, 6, 7, 8, 9, 10
pX, pK, pV, pWQ, pWO, pOUT, pDBG, pWS = 44, 46, 48, 50, 52, 36, 38, 40
R0, R1, R2, R3, R4, R5 = 56, 60, 64, 68, 72, 96
sT0, sT1, sT2 = 3, 11, 12
sSTG, sE, sXO, sFV = 13, 14, 15, 15
RT, sFM, sHV = 20, 24, 25
sH = 76
sKB, sVB, sC, sSPIN, sOWN, sSND, sU, sRHO = 84, 85, 86, 87, 88, 89, 93, 94
sTAG, sM0, sM1 = 53, 48, 50

def srd(e, R, ptr, off, records):
    if off is None: e(f"s_mov_b32 s{R}, s{ptr}\ns_mov_b32 s{R+1}, s{ptr+1}")
    else: e(f"s_add_u32 s{R}, s{ptr}, s{off}\ns_addc_u32 s{R+1}, s{ptr+1}, 0")
    e(f"s_mov_b32 s{R+2}, {records}\ns_mov_b32 s{R+3}, 0x00020000")
def S(R): return f"s[{R}:{R+3}]"
def vr(a, n=4): return f"v[{a}:{a+n-1}]" if n > 1 else f"v{a}"
MF = "v_mfma_f32_16x16x32_bf16"

class G:
    def __init__(self, cfg):
        self.c = cfg; self.e = E(); self.ool = []; self.uid = 0; self.ptorder = []
    def U(self):
        self.uid += 1; return self.uid
    def clock(self): return f"s_mem{'' if self.c.clk else 'real'}time s[100:101]"
    def pt(self, label):
        if not self.c.pts or label not in self.c.pts: return
        k = len(self.ptorder); self.ptorder.append(label); assert k < 20
        if k: self.e(f"s_mov_b32 s{16 + k - 1}, s100")
        self.e(self.clock())
    def lane_stamp(self, k):
        if self.c.diag and (self.c.fine or k == 63):
            self.e(f"{self.clock()}\ns_waitcnt lgkmcnt(0)\nv_writelane_b32 v30, s100, {k}")
    def dump(self, helper):
        e = self.e; c = self.c
        if not c.diag: return
        e("s_waitcnt vmcnt(0) lgkmcnt(0)")
        if helper:
            if c.dbgout is not None: return
            e(f"s_lshl_b32 s{sT0}, s2, 3\ns_add_u32 s{sT0}, s{sT0}, s{sW}\ns_lshl_b32 s{sT0}, s{sT0}, 8\ns_add_u32 s{sT0}, s{sT0}, {c.ws_s + (1 << 20)}")
            srd(e, R0, pWS, sT0, 256)
            e(f"v_lshlrev_b32 v26, 2, v1\nbuffer_store_dword v30, v26, {S(R0)}, 0 offen\ns_waitcnt vmcnt(0)")
            return
        n = len(self.ptorder)
        e(f"s_mov_b32 s{16 + n - 1}, s100")
        if c.dbgout is not None:
            e(f"s_cmp_eq_u32 s2, {c.dbgout}\ns_cbranch_scc0 L_nodbg\ns_cmp_eq_u32 s{sW}, 0\ns_cbranch_scc0 L_nodbg")
            srd(e, R0, pDBG, None, 256)
            for k in range(n):
                e(f"s_sub_u32 s{sT0}, s{16 + k}, s16\nv_mov_b32 v110, s{sT0}\nbuffer_store_dword v110, off, {S(R0)}, 0 offset:{4*k}")
            e("s_waitcnt vmcnt(0)\nL_nodbg:")
            return
        e(f"s_lshl_b32 s{sT0}, s2, 3\ns_add_u32 s{sT0}, s{sT0}, s{sW}\ns_lshl_b32 s{sT0}, s{sT0}, 7\ns_add_u32 s{sT0}, s{sT0}, {c.ws_s}")
        srd(e, R0, pWS, sT0, 128)
        for k in range(n):
            e(f"v_mov_b32 v110, s{16 + k}\nbuffer_store_dword v110, off, {S(R0)}, 0 offset:{4*k}")
        e("s_waitcnt vmcnt(0)")

    def entry(self):
        self.e(f"""
        s_cmp_ge_u32 s2, 256
        s_cbranch_scc1 L_end
        s_load_dwordx16 s[16:31], s[0:1], 0
        s_load_dwordx8 s[32:39], s[0:1], 64
        s_load_dwordx2 s[40:41], s[0:1], 96
        v_lshrrev_b32 v2, 6, v0
        v_and_b32 v1, 63, v0
        v_readfirstlane_b32 s{sW}, v2
        s_and_b32 s{sT0}, s2, 7
        s_lshr_b32 s{sBLK}, s{sT0}, 2
        s_and_b32 s{sKG}, s2, 3
        s_lshr_b32 s{sBG}, s2, 5
        s_lshr_b32 s{sHP}, s2, 3
        s_and_b32 s{sHP}, s{sHP}, 3
        s_and_b32 s{sWL}, s{sW}, 3
        s_lshl_b32 s{sB}, s{sBG}, 2
        s_add_u32 s{sB}, s{sB}, s{sWL}
        s_cmp_eq_u32 s{sBLK}, 0
        s_waitcnt lgkmcnt(0)
        s_cselect_b64 s[{pX}:{pX+1}], s[16:17], s[26:27]
        s_cselect_b64 s[{pK}:{pK+1}], s[18:19], s[28:29]
        s_cselect_b64 s[{pV}:{pV+1}], s[20:21], s[30:31]
        s_cselect_b64 s[{pWQ}:{pWQ+1}], s[22:23], s[32:33]
        s_cselect_b64 s[{pWO}:{pWO+1}], s[24:25], s[34:35]
        s_cmp_lt_u32 s{sW}, 4
        s_cbranch_scc1 L_compute
        """)

    def vm(self, txt, tag=None):
        self.e.vmem(txt if not self.c.nodma else "s_nop 0", tag)
    def dma4(self, R, voffs, m0, soff, pol, tag, pre=None):
        e = self.e
        e(f"s_add_u32 m0, s{m0[0]}, {m0[1]}")
        if pre: e(pre)
        for j in range(4):
            self.vm(f"buffer_load_dwordx4 v{voffs[j]}, {S(R)}, s{soff} offen offset:{j*1024} {pol} lds", tag)
    def hs(self, j):
        c = self.c
        if j % 2 == 0:
            pre = f"s_mov_b32 s{sXO}, 0\ns_mov_b32 s{sSTG}, 0" if j == 0 else \
                  f"s_add_u32 s{sRHO}, s{sRHO}, 1\ns_lshl_b32 s{sXO}, s{sRHO}, 7\ns_lshl_b32 s{sSTG}, s{sRHO}, 19\ns_and_b32 s{sRHO}, s{sRHO}, 7"
            self.dma4(R5, [160, 161, 162, 163], (sOWN, XS_[(j >> 1) % 3]), sXO, c.pol_x, None, pre)
            self.dma4(R0, [4, 5, 6, 7], (sOWN, WS_[j % 6]), sSTG, c.pol_wq, None)
        else:
            self.dma4(R0, [4, 5, 6, 7], (sOWN, WS_[j % 6]), sSTG, c.pol_wq, None, f"s_add_u32 s{sSTG}, s{sSTG}, 262144")
    def sflag(self, val):
        self.e(f"s_mov_b32 m0, s{sFM}\ns_mov_b32 s{sT1}, {4*val}")
        self.e.vmem(f"buffer_load_dword off, {S(RT)}, s{sT1} lds", f"sf{val}")
    def publish(self, val):
        self.e.wait(vm="sf18")
        self.e(f"s_waitcnt lgkmcnt(0)\nv_mov_b32 v28, {val}\nds_max_u32 v27, v28")
        self.lane_stamp(val)
    def kv_burst(self, g):
        e = self.e; c = self.c
        for a in range(2):
            if g < 2: e(f"s_mov_b32 s{sU}, {g*8192 + a*4096}")
            else: e(f"s_add_u32 s{sU}, s{sHV + g - 2}, {a*4096}")
            for j in range(4):
                self.vm(f"buffer_load_dwordx4 {vr(32 + 32*g + 16*a + 4*j)}, v{8 + j}, {S(R1 if g < 2 else R2)}, s{sU} offen offset:{j*1024} {c.pol_k if g < 2 else c.pol_v}", f"kv{g}")
    def kv_write(self, g):
        self.e.wait(vm=f"kv{g}")
        for p in range(8):
            self.e(f"ds_write_b128 v{19 if g < 2 else 18}, {vr(32 + 32*g + 4*p)} offset:{[KR - KR1, 0, 0, 0][g] + p*1024}")
    def wo(self, hd):
        c = self.c; slot = WOS[hd % 3]
        self.lane_stamp(50 + hd)
        self.dma4(R3, [13, 14, 15, 16], (sKB, slot), sH + hd, c.pol_wo, f"wo{hd}")
        self.dma4(R3, [13, 14, 15, 16], (sKB, slot + 4096), sT1, c.pol_wo, f"wo{hd}", f"s_add_u32 s{sT1}, s{sH + hd}, 18432")
        self.e(f"s_add_u32 m0, s{sVB}, {slot + 32768}")
        self.vm(f"buffer_load_dwordx4 v17, {S(R3)}, s{sH + hd} offen {c.pol_wo} lds", f"wo{hd}")
    def vdma(self, hd):
        self.lane_stamp(40 + hd)
        self.dma4(R2, [8, 9, 10, 11], (sKB, VR), sHV + hd, self.c.pol_v, None)
        self.dma4(R2, [8, 9, 10, 11], (sKB, VR + 4096), sT1, self.c.pol_v, None, f"s_add_u32 s{sT1}, s{sHV + hd}, 4096")
    def touch(self, hds):
        if not hds: return
        u = self.U()
        self.e(f"s_cmp_eq_u32 s{sW}, 7\ns_cbranch_scc0 L_nt{u}")
        for hd in hds:
            self.e(f"buffer_load_dword v24, v25, {S(R4)}, s{sH+hd} offen {self.c.pol_wot}" if not self.c.nodma else "s_nop 0")
        self.e(f"L_nt{u}:")
    def fsrc(self, thr):
        return "ds_read_b32 v29, v26" + (f" offset:{FREEB - FREEA}" if self.c.free_ds <= thr <= 20 else "")
    def need_free(self, thr):
        e = self.e
        if thr <= self.known_free: return
        self.known_free = thr
        if thr >= 21:
            assert not self.polled
            e("s_barrier"); return
        if self.c.freerun and thr < 16:
            self.polled = False; return
        u = self.U()
        if not self.polled: e(self.fsrc(thr))
        self.polled = False
        e(f"s_waitcnt lgkmcnt(0)\nv_cmp_gt_u32 vcc, {thr}, v29\ns_cbranch_vccnz L_fs{u}\nL_fo{u}:")
        self.hool.append(f"""
        L_fs{u}:
        s_mov_b32 s{sSPIN}, 0
        L_fl{u}:
        s_sleep {self.c.hsleep}
        {self.fsrc(thr)}
        s_add_u32 s{sSPIN}, s{sSPIN}, 1
        s_cmp_lt_u32 s{sSPIN}, 0x100000
        s_waitcnt lgkmcnt(0)
        s_cbranch_scc0 L_fo{u}
        v_cmp_gt_u32 vcc, {thr}, v29
        s_cbranch_vccnz L_fl{u}
        s_branch L_fo{u}
        """)
    def helper_body(self, off):
        e = self.e; c = self.c
        self.known_free = 0; self.polled = False; self.hool = []
        it = []
        for j in range(1, 18): it.append((max(0, j - 5 + (1 - (j & 1))), 0, 'hs', j))
        for g in range(4): it.append((c.bursts[g] + (off if c.bursts[g] < 15 else 0), 1, 'kv', g))
        if c.t0_at is not None:
            it.append((c.t0_at + (off if c.t0_at < 14 else 0), 2, 'touch', list(range(c.t_split))))
            if c.t1_at is None:
                for hd in range(c.t_split, 8): it.append((max(20, 20 + hd - c.t_lead), 2, 'touch', [hd]))
            else: it.append((c.t1_at + (off if c.t1_at < 14 else 0), 5, 'touch', list(range(c.t_split, 8))))
        it.append((max(14, c.wo0_at), 3, 'wo', 0))
        it += [(16, 0, 'kw', 0), (17, 0, 'kw', 1), (18, 4, 'vw', 0), (20, 0, 'wo', 1), (20, 1, 'wo', 2), (21, 0, 'vw', 1)]
        for hd in range(2, 8):
            it.append((20 + hd, 0, 'v', hd))
            if hd + 1 < 8: it.append((20 + hd, 1, 'wo', hd + 1))
        it.sort(key=lambda t: (t[0], t[1]))
        late21 = False
        for n, (thr, _, kind, arg) in enumerate(it):
            self.need_free(thr)
            nxt = it[n + 1][0] if n + 1 < len(it) else 0
            if 21 > nxt > self.known_free and kind in ('hs', 'wo'):
                e(self.fsrc(nxt)); self.polled = True
            if kind == 'hs':
                self.hs(arg); self.sflag(arg + 1)
                if c.fine and c.freerun and arg in (3, 5, 9, 13, 17): e('s_waitcnt vmcnt(0)'); self.lane_stamp(32 + arg // 4)
            elif kind == 'kv': self.kv_burst(arg)
            elif kind == 'touch': self.touch(arg)
            elif kind == 'kw':
                self.kv_write(arg); self.publish(19 + arg)
            elif kind == 'vw':
                self.kv_write(2 + arg)
                e.wait(vm=f"wo{arg}"); self.publish(21 + arg)
            elif kind == 'wo': self.wo(arg)
            elif kind == 'v':
                assert f"wo{arg}" in e.vm.tags
                self.vdma(arg); self.sflag(21 + arg)
        self.lane_stamp(63)
        self.dump(True)
        e("s_endpgm")
        for b in self.hool: e(b)
    def head_offsets(self, bases):
        for hd, (a, r) in enumerate(HORD):
            if r == 0: self.e(f"s_add_u32 s{sT0}, s{sHP}, {a}\ns_and_b32 s{sT0}, s{sT0}, 3\ns_lshl_b32 s{sT0}, s{sT0}, 1")
            else: self.e(f"s_add_u32 s{sT0}, s{sT0}, 1")
            for base, mul in bases: self.e(f"s_mul_i32 s{base + hd}, s{sT0}, {mul}")
    def helper(self):
        e = self.e; c = self.c
        e.vm.__init__('vmcnt', 63)
        e(f"""
        s_lshl_b32 s{sRHO}, s{sHP}, 1
        s_add_u32 s{sRHO}, s{sRHO}, s{sBG}
        s_mul_i32 s{sT0}, s{sKG}, {c.rotk}
        s_add_u32 s{sRHO}, s{sRHO}, s{sT0}
        s_and_b32 s{sRHO}, s{sRHO}, {7 if c.rot else 0}
        s_lshr_b32 s{sT2}, s{sWL}, 1
        s_lshl_b32 s{sT0}, s{sKG}, 3
        s_lshl_b32 s{sT1}, s{sHP}, 1
        s_add_u32 s{sT0}, s{sT0}, s{sT1}
        s_add_u32 s{sT0}, s{sT0}, s{sT2}
        s_lshl_b32 s{sT0}, s{sT0}, 8
        s_and_b32 s{sT1}, s{sWL}, 1
        s_lshl_b32 s{sT1}, s{sT1}, 17
        s_add_u32 s{sT0}, s{sT0}, s{sT1}
        s_sub_u32 s{sT2}, 4718592, s{sT0}
        """)
        srd(e, R0, pWQ, sT0, f"s{sT2}")
        e(f"s_mul_i32 s{sT0}, s{sB}, 36864")
        srd(e, R5, pX, sT0, 36864)
        e(f"""
        s_lshl_b32 s{sOWN}, s{sWL}, 12
        v_lshrrev_b32 v20, 3, v1
        v_mul_u32_u24 v20, 1152, v20
        v_and_b32 v21, 7, v1
        v_lshrrev_b32 v22, 4, v1
        v_xor_b32 v21, v21, v22
        v_lshlrev_b32 v21, 4, v21
        v_add_u32 v160, v20, v21
        v_xor_b32 v21, 64, v21
        v_add_u32 v161, v20, v21
        v_add_u32 v162, 16384, v160
        v_add_u32 v163, 24576, v161
        v_add_u32 v161, 8192, v161
        v_bfe_u32 v23, v1, 2, 2
        v_lshlrev_b32 v21, 6, v22
        v_lshl_add_u32 v20, v23, 13, v21
        v_and_b32 v21, 3, v1
        v_lshl_add_u32 v4, v21, 4, v20
        v_add_u32 v5, 31744, v4
        v_xor_b32 v7, 32, v4
        v_add_u32 v6, 63488, v7
        v_add_u32 v7, 95232, v7
        """)
        self.hs(0)
        e(f"""
        v_mul_u32_u24 v26, 260, v21
        v_add_u32 v26, {FREEA}, v26
        s_lshl_b32 s{sFM}, s{sWL}, 8
        s_add_u32 s{sFM}, s{sFM}, {FULLA}
        v_lshl_add_u32 v27, v1, 2, s{sFM}
        s_lshl_b32 s{sT0}, s2, 7
        s_add_u32 s{sT0}, s{sT0}, {c.ws_t}
        """)
        srd(e, RT, pWS, sT0, 128)
        e(f"""
        s_lshl_b32 s{sT0}, s{sB}, 5
        s_lshl_b32 s{sT1}, s{sKG}, 3
        s_add_u32 s{sT0}, s{sT0}, s{sT1}
        s_lshl_b32 s{sT2}, s{sT0}, 13
        """)
        srd(e, R2, pV, sT2, 65536)
        e(f"s_lshl_b32 s{sT1}, s{sHP}, 14\ns_add_u32 s{sT2}, s{sT2}, s{sT1}")
        srd(e, R1, pK, sT2, 16384)
        e(f"""
        v_and_b32 v20, 15, v1
        v_xor_b32 v20, v20, v22
        v_lshlrev_b32 v20, 4, v20
        v_lshl_add_u32 v8, v22, 8, v20
        v_xor_b32 v9, 64, v8
        v_xor_b32 v10, 0x80, v8
        v_xor_b32 v11, 0xc0, v8
        s_lshl_b32 s{sKB}, s{sWL}, 13
        s_lshl_b32 s{sVB}, s{sWL}, 10
        s_add_u32 s{sT0}, s{sKB}, {KR1}
        v_lshl_add_u32 v19, v1, 4, s{sT0}
        v_add_u32 v18, {VR - KR1}, v19
        s_mul_i32 s{sT0}, s{sKG}, 1179648
        """)
        srd(e, R4, pWO, sT0, 1179648)
        e(f"""
        s_mul_i32 s{sT1}, s{sWL}, 36864
        s_add_u32 s{sT0}, s{sT0}, s{sT1}
        s_lshl_b32 s{sT1}, s{sHP}, 8
        s_add_u32 s{sT0}, s{sT0}, s{sT1}
        s_sub_u32 s{sT2}, 4718592, s{sT0}
        """)
        srd(e, R3, pWO, sT0, f"s{sT2}")
        e(f"""
        v_add_u32 v20, s{sKG}, v22
        v_and_b32 v20, 3, v20
        v_mul_u32_u24 v23, 1152, v23
        v_lshl_add_u32 v23, v20, 6, v23
        v_lshl_add_u32 v13, v21, 4, v23
        v_add_u32 v14, 3584, v13
        v_xor_b32 v16, 32, v13
        v_add_u32 v15, 7168, v16
        v_add_u32 v16, 10752, v16
        v_bfe_u32 v20, v1, 1, 2
        v_bfe_u32 v21, v1, 3, 1
        v_lshl_add_u32 v20, v21, 3, v20
        v_bfe_u32 v21, v1, 4, 1
        v_lshl_add_u32 v20, v21, 2, v20
        v_bfe_u32 v22, v1, 5, 1
        v_lshl_add_u32 v20, v22, 4, v20
        v_mul_u32_u24 v20, 1152, v20
        v_and_b32 v22, 1, v1
        v_lshl_add_u32 v20, v22, 4, v20
        s_mul_i32 s{sT0}, s{sHP}, 224
        s_sub_u32 s{sT0}, 1024, s{sT0}
        v_add_u32 v17, s{sT0}, v20
        s_lshl_b32 s{sT0}, s{sBG}, 4
        v_and_b32 v20, 15, v1
        v_add_u32 v20, s{sT0}, v20
        v_mul_u32_u24 v20, 1152, v20
        v_lshl_add_u32 v21, v21, 7, s{sT1}
        v_mov_b32 v22, 1024
        v_cmp_gt_u32 vcc, 32, v1
        v_cndmask_b32 v21, v22, v21, vcc
        v_add_u32 v25, v20, v21
        """)
        self.head_offsets([(sH, 147456), (sHV, 8192)])
        e("s_barrier")
        self.sflag(1)
        if c.nstag > 1:
            e(f"s_and_b32 s{sT0}, s{sBG}, {c.nstag - 1}")
            for o in range(1, c.nstag): e(f"s_cmp_eq_u32 s{sT0}, {o}\ns_cbranch_scc1 L_hv{o}")
        saved = copy.deepcopy(e.vm)
        for o in range(c.nstag):
            e.vm = copy.deepcopy(saved)
            if o: e(f"L_hv{o}:")
            self.helper_body(o * c.sstep)

    def compute(self):
        e = self.e; c = self.c
        e.vm.__init__('vmcnt', 63); e.lg.__init__('lgkmcnt', 15)
        ACC, FA, FB, D = 32, 160, 192, c.dist
        e("L_compute:")
        self.pt("entry")
        e(f"s_lshl_b32 s{sT0}, s2, 7\ns_add_u32 s{sT0}, s{sT0}, {c.ws_t}")
        srd(e, R5, pWS, sT0, 128)
        e(f"v_and_b32 v16, 31, v1\nv_lshlrev_b32 v13, 2, v16")
        e.vmem(f"buffer_store_dword v16, v13, {S(R5)}, 0 offen sc1", 'tab')
        e(f"""
        s_lshl_b32 s{sT0}, s{sBLK}, 5
        s_add_u32 s{sT2}, s{sT0}, s{sB}
        s_lshl_b32 s{sT0}, s{sT2}, 7
        s_add_u32 s{sT0}, s{sT0}, {c.ws_e}
        """)
        srd(e, R2, pWS, sT0, 128)
        e.vmem(f"buffer_load_dword v14, off, {S(R2)}, 0 sc1", 'epoch')
        e(f"""
        v_and_b32 v21, 3, v1
        v_mul_u32_u24 v22, 260, v21
        v_add_u32 v22, {FULLA}, v22
        s_lshl_b32 s{sT0}, s{sWL}, 8
        s_add_u32 s{sT0}, s{sT0}, {FREEA}
        v_lshl_add_u32 v23, v1, 2, s{sT0}
        s_mov_b32 m0, s{sT0}
        v_mov_b32 v15, 0
        ds_write_b32 v23, v15
        v_add_u32 v19, {FULLA - FREEA}, v23
        ds_write_b32 v19, v15
        v_add_u32 v23, {FREEB - FREEA}, v23
        ds_write_b32 v23, v15
        s_lshl_b32 s{sT0}, s{sT2}, 11
        s_add_u32 s{sT0}, s{sT0}, {c.ws_f}
        """)
        srd(e, R1, pWS, sT0, 2048)
        e(f"""
        s_lshl_b32 s{sOWN}, s{sKG}, 2
        s_add_u32 s{sOWN}, s{sOWN}, s{sHP}
        s_lshl_b32 s{sOWN}, s{sOWN}, 7
        s_lshl_b32 s{sT0}, s{sT2}, 16
        s_lshl_b32 s{sT1}, s{sKG}, 14
        s_add_u32 s{sT0}, s{sT0}, s{sT1}
        s_add_u32 s{sT0}, s{sT0}, {c.ws_o}
        """)
        srd(e, R0, pWS, sT0, 16384)
        e(f"""
        s_lshl_b32 s{sT0}, s{sT2}, 2
        s_add_u32 s{sT0}, s{sT0}, s{sHP}
        s_lshl_b32 s{sT0}, s{sT0}, 16
        s_add_u32 s{sT0}, s{sT0}, {c.ws_p}
        """)
        srd(e, R3, pWS, sT0, 65536)
        e(f"""
        s_mul_i32 s{sT0}, s{sB}, 73728
        s_mul_i32 s{sT1}, s{sBLK}, 1152
        s_add_u32 s{sT0}, s{sT0}, s{sT1}
        s_sub_u32 s{sT1}, 2359296, s{sT0}
        """)
        srd(e, R4, pOUT, sT0, f"s{sT1}")
        e(f"""
        v_lshrrev_b32 v17, 4, v1
        v_and_b32 v18, 15, v1
        v_bfe_u32 v19, v1, 2, 2
        v_lshlrev_b32 v19, 6, v19
        v_and_b32 v20, 1, v17
        v_lshl_add_u32 v19, v20, 5, v19
        v_lshl_add_u32 v19, v21, 3, v19
        v_lshl_add_u32 v2, v17, 11, v19
        v_lshrrev_b32 v19, 5, v1
        v_lshlrev_b32 v19, 9, v19
        v_lshl_add_u32 v3, v16, 3, v19
        v_lshrrev_b32 v19, 1, v18
        v_xor_b32 v19, v19, v17
        v_lshlrev_b32 v19, 4, v19
        v_lshl_add_u32 v19, v18, 7, v19
        s_lshl_b32 s{sT0}, s{sWL}, 12
        v_add_u32 v6, s{sT0}, v19
        v_lshrrev_b32 v19, 1, v17
        v_xor_b32 v19, v19, v18
        v_lshlrev_b32 v19, 4, v19
        v_lshl_add_u32 v19, v18, 8, v19
        v_lshl_add_u32 v19, v20, 3, v19
        s_lshl_b32 s{sT0}, s{sWL}, 13
        s_add_u32 s{sKB}, s{sT0}, {KR1}
        s_add_u32 s{sVB}, s{sT0}, {VR}
        v_add_u32 v9, s{sKB}, v19
        v_xor_b32 v19, v17, v18
        v_lshlrev_b32 v19, 4, v19
        v_lshl_add_u32 v19, v18, 8, v19
        v_add_u32 v12, s{sVB}, v19
        v_lshlrev_b32 v10, 4, v1
        s_lshl_b32 s{sT0}, s{sKG}, 9
        v_lshl_add_u32 v11, v21, 7, s{sT0}
        s_mov_b32 s{sC}, 0x3e0293ee
        """)
        for a in range(4): e(f"s_add_u32 s{sT0}, s{sHP}, {a}\ns_and_b32 s{sT0}, s{sT0}, 3\ns_lshl_b32 s{sH + a}, s{sT0}, 12")
        e.wait(vm='tab')
        e("s_waitcnt lgkmcnt(0)\ns_barrier")

        def fread(): e.ds("ds_read_b32 v21, v22", "full")
        def fcmp(val): e.wait(lg="full"); e(f"v_cmp_gt_u32 vcc, {val}, v21")
        def fbranch(val):
            if c.freerun and 1 < val <= 18: return
            u = self.U()
            e(f"s_cbranch_vccnz L_cs{u}\nL_co{u}:")
            self.ool.append(f"""
            L_cs{u}:
            s_mov_b32 s{sSPIN}, 0
            L_cl{u}:
            ds_read_b32 v21, v22
            s_add_u32 s{sSPIN}, s{sSPIN}, 1
            s_cmp_lt_u32 s{sSPIN}, 0x100000
            s_waitcnt lgkmcnt(0)
            s_cbranch_scc0 L_co{u}
            v_cmp_gt_u32 vcc, {val}, v21
            s_cbranch_vccnz L_cl{u}
            s_branch L_co{u}
            """)
        def fcheck(val): fcmp(val); fbranch(val)
        def ffree(val): e(f"v_mov_b32 v20, {val}"); e.ds("ds_write_b32 v23, v20")
        FREE_DMA = ("v", f"buffer_load_dword off, {S(R5)}, s{sFV} lds", None)
        def emit_op(op):
            if op[0] == 's': e(op[1])
            elif op[0] == 'v': e.vmem(op[1], op[2])
            elif op[0] == 'd': e.ds(op[1], op[2])
            else: op[1]()
        fixed = {}
        def fx(pos, op):
            assert pos not in fixed, pos
            fixed[pos] = [op] if op else []

        def qread(g, jj):
            j, a = g >> 4, g & 15
            base = WS_[j % 6]; hi = base >= 64*KB
            e.ds(f"ds_read_b64_tr_b16 {vr(FA + 4*(g & 7) + 2*jj, 2)}, v{(16 if hi else 4) + (a & 1)} offset:{base - hi*64*KB + (a >> 3)*8192 + jj*1024 + ((a & 7) >> 1)*256}", f"a{g}")
        def xread_op(j, rt):
            base = XS_[(j >> 1) % 3]; hi = base >= 96*KB
            return ("d", f"ds_read_b128 {vr(FB + 8*(j & 1) + 4*rt)}, v{(18 if hi else 7) + (j & 1)} offset:{base - hi*96*KB + rt*2048}", f"x{j}")
        e(f"""
        v_mov_b32 v4, v2
        v_xor_b32 v5, 32, v2
        v_add_u32 v16, {64*KB}, v4
        v_add_u32 v17, {64*KB}, v5
        v_mov_b32 v7, v6
        v_xor_b32 v8, 64, v6
        v_add_u32 v18, {96*KB}, v7
        v_add_u32 v19, {96*KB}, v8
        """)
        fread(); fcheck(1)
        self.pt('hs0')
        emit_op(xread_op(0, 0)); emit_op(xread_op(0, 1))
        for g in range(D): qread(g, 0); qread(g, 1)
        offs = [o * c.sstep for o in range(c.nstag)]
        free_odd = {b + o for b in c.bursts + ([c.t0_at, c.t1_at or 0] if c.t0_at is not None else []) for o in offs} | {c.wo0_at}
        for p in range(1, 19):
            gB = 16*p - D
            if p >= c.free_ds:
                fx(2*(gB - 4), ("s", f"v_mov_b32 v20, {p}")); fx(2*(gB + 1), ("d", "ds_write_b32 v23, v20", None))
            elif p % 2 == 0 or p in free_odd:
                fx(2*(gB - 4), ("s", f"s_mov_b32 s{sFV}, {4*p}")); fx(2*(gB + 1), FREE_DMA)
            if p < 18:
                fx(2*(gB - 8), ("f", fread))
                fx(2*gB - 2, ("f", lambda p=p: fcmp(p + 1)))
                fx(2*gB, ("f", lambda p=p: (fbranch(p + 1), self.pt(f'hs{p}'))))
                fx(2*(gB + 2), xread_op(p, 0)); fx(2*(gB + 3), xread_op(p, 1))
        fx(41, ("f", lambda: (e.wait(vm='epoch'), e(f"v_readfirstlane_b32 s{sE}, v14"))))
        for g in range(288):
            j, a = g >> 4, g & 15
            for rt in range(2):
                if rt == 0 and a == 0: e.wait(lg=f"x{j}")
                if rt == 0 and g % 2 == 0: e.wait(lg=f"a{g + 1}")
                acc = vr(ACC + (2*a + rt)*4)
                e(f"{MF} {acc}, {vr(FA + 4*(g & 7))}, {vr(FB + 8*(j & 1) + 4*rt)}, {acc if j else 0}")
                for op in fixed.get(2*g + rt, []): emit_op(op)
                if g + D < 288: qread(g + D, rt)
        self.pt('qpend')
        QB = [32, 96]
        def qcvt(r):
            for s in range(4):
                for rt in range(2):
                    for u in range(2):
                        for q in range(2):
                            src = ACC + 64*r + 16*s + 8*u + 4*rt + 2*q
                            e(f"v_cvt_pk_bf16_f32 v{QB[r] + 8*s + 4*rt + 2*u + q}, v{src}, v{src+1}")
        SX, TM, PR, KF = [64, 128], [88, 152], 192, [FA, 208]
        fread()
        for k in range(8): e(f"v_xor_b32 v{24+k}, {32*k}, v9" if k else "v_mov_b32 v24, v9")
        qcvt(0)
        fcheck(19)
        self.pt('Kok')
        def kreads(r):
            for s in range(4):
                for kt in range(2):
                    for hf in range(2):
                        e.ds(f"ds_read_b64 {vr(KF[r] + 8*s + 4*kt + 2*hf, 2)}, v{24 + 2*s + hf} offset:{(KR - KR1)*(1 - r) + kt*4096}", f"k{r}{s}{kt}")
        kreads(0)
        fread()
        qcvt(1)
        def smfma(r):
            L = []
            for s in range(4):
                for kt in range(2):
                    for rt in range(2):
                        acc = vr(SX[r] + 8*kt + 4*rt)
                        L.append((f"k{r}{s}{kt}", f"{MF} {acc}, {vr(KF[r] + 8*s + 4*kt)}, {vr(QB[r] + 8*s + 4*rt)}, {acc if s else 0}"))
            return L
        def softmax(r):
            Sx, TMP = SX[r], TM[r]
            t0, t1, t2, t3 = TMP, TMP+1, TMP+2, TMP+3
            def val(rt, i): return Sx + 8*(i >> 2) + 4*rt + (i & 3)
            L = []
            for rt in range(2):
                t = TMP + 2*rt
                L += [f"v_max3_f32 v{t}, v{val(rt,0)}, v{val(rt,1)}, v{val(rt,2)}", f"v_max3_f32 v{t+1}, v{val(rt,3)}, v{val(rt,4)}, v{val(rt,5)}"]
            for rt in range(2): L.append(f"v_max3_f32 v{TMP + 2*rt}, v{TMP + 2*rt}, v{val(rt,6)}, v{val(rt,7)}")
            for rt in range(2): L.append(f"v_max_f32 v{TMP + 2*rt}, v{TMP + 2*rt}, v{TMP + 2*rt + 1}")
            xred = lambda op: [f"v_permlane32_swap_b32 v{t0}, v{t2}", f"{op} v{t0}, v{t0}, v{t2}", f"v_mov_b32 v{t1}, v{t0}",
                               f"v_permlane16_swap_b32 v{t0}, v{t1}", f"{op} v{t0}, v{t0}, v{t1}"]
            L += xred("v_max_f32")
            L += [f"v_mul_f32 v{t0}, s{sC}, v{t0}", f"v_mov_b32 v{t2}, v{t0}", f"v_permlane32_swap_b32 v{t0}, v{t2}"]
            for rt in range(2): L += [f"v_fma_f32 v{val(rt,i)}, v{val(rt,i)}, s{sC}, -v{TMP + 2*rt}" for i in range(8)]
            for rt in range(2): L += [f"v_exp_f32 v{val(rt,i)}, v{val(rt,i)}" for i in range(8)]
            for rt in range(2): L.append(f"v_pk_add_f32 {vr(TMP + 2*rt, 2)}, {vr(val(rt,0), 2)}, {vr(val(rt,2), 2)}")
            for k in (4, 6):
                for rt in range(2): L.append(f"v_pk_add_f32 {vr(TMP + 2*rt, 2)}, {vr(TMP + 2*rt, 2)}, {vr(val(rt,k), 2)}")
            L += [f"v_add_f32 v{t0}, v{t0}, v{t1}", f"v_add_f32 v{t2}, v{t2}, v{t3}"]
            L += xred("v_add_f32")
            L += [f"v_rcp_f32 v{t0}, v{t0}", f"v_mov_b32 v{t2}, v{t0}", f"v_permlane32_swap_b32 v{t0}, v{t2}"]
            for rt in range(2):
                L += [f"v_pk_mul_f32 {vr(val(rt,i), 2)}, {vr(val(rt,i), 2)}, {vr(TMP + 2*rt, 2)} op_sel_hi:[1,0]" for i in range(0, 8, 2)]
            for rt in range(2):
                L += [f"v_cvt_pk_bf16_f32 v{PR + 8*r + 4*rt + q}, v{val(rt,2*q)}, v{val(rt,2*q+1)}" for q in range(4)]
                L.append(f"buffer_store_dwordx4 {vr(PR + 8*r + 4*rt)}, v10, {S(R0)}, s{sH} offen offset:{(2*r + rt)*1024} sc1")
            return L
        def put(x): e.vmem(x, "pst") if x.startswith("buffer") else e(x)
        for n, (tag, m) in enumerate(smfma(0)):
            e.wait(lg=tag); e(m)
            if n == 7:
                fcheck(20); self.pt('K1ok'); kreads(1); ffree(20)
        A, B = softmax(0), softmax(1)
        for n, (tag, m) in enumerate(smfma(1)):
            e.wait(lg=tag); e(m)
            if n >= 3: put(A.pop(0)); put(A.pop(0))
        fread()
        while A or B:
            if B: put(B.pop(0))
            if A: put(A.pop(0))
        self.pt('sm')

        PT = [32, 48, 64, 80]; NA = 96; VF = 104; VWA = 136; VWB = 152
        def PA(nt, rt): return (NA + 4*rt) if nt == 8 else PT[nt >> 1] + 8*(nt & 1) + 4*rt
        def pread(g, jj):
            hd, nt, sg = g // 36, NTO[(g % 36) >> 2], g & 3
            base = WOS[hd % 3]
            if nt < 8:
                hi = base >= 64*KB
                a, off = (16 if hi else 4) + (nt & 1), base - hi*64*KB + sg*8192 + jj*1024 + (nt >> 1)*256
            else:
                hi = base > 0
                a, off = 18 + hi, base - hi*WOS[1] + sg*1024 + jj*256
            e.ds(f"ds_read_b64_tr_b16 {vr(FA + 4*(g & 7) + 2*jj, 2)}, v{a} offset:{off}", f"a{g}")
        def vread(hd, sg, kt):
            e.ds(f"ds_read_b128 {vr(VF + 8*sg + 4*kt)}, v{24 + sg} offset:{kt*4096}", f"vf{hd}_{sg}")
        for sg in range(4): e(f"v_xor_b32 v{24 + sg}, {64*sg}, v12" if sg else "v_mov_b32 v24, v12")
        e(f"v_add_u32 v18, 32768, v3\nv_add_u32 v19, {32768 + WOS[1]}, v3")
        fcheck(21)
        self.pt('h0')
        for sg in range(4): vread(0, sg, 0); vread(0, sg, 1)
        for g in range(D): pread(g, 0); pread(g, 1)
        e("s_barrier")
        fixed.clear(); soft = {}
        def at(N, ops): soft.setdefault(N, []).extend(ops)
        for hd in range(1, 8):
            N = 9*hd
            assert D == 6
            fx((N - 4, 0), ("d", "ds_read_b32 v21, v22", "full"))
            fx((N - 2, 0), ("f", lambda hd=hd: fcmp(21 + hd)))
            fx((N - 2, 1), ("f", lambda hd=hd: (fbranch(21 + hd), self.pt(f'h{hd}'))))
            if hd < 7: fx((N, 0), ("s", "s_barrier"))
        def flag_test(): return f"s_add_u32 s{sT1}, s{sE}, 1\nv_cmp_ne_u32 vcc, s{sT1}, v14"
        def setflag():
            self.pt('fq'); e.wait(vm='pst'); self.pt('f')
            e(f"s_add_u32 s{sT1}, s{sE}, 1\nv_mov_b32 v15, s{sT1}")
            e.vmem(f"buffer_store_dword v15, v13, {S(R1)}, s{sOWN} offen sc1")
        def check():
            self.pt('cq'); e.wait(vm='poll'); e(flag_test()); e("s_cbranch_vccnz L_p_spin\nL_p_ok:"); self.pt('c')
            self.ool.append(f"""
            L_p_spin:
            s_mov_b32 s{sSPIN}, 0
            L_p_lp:
            buffer_load_dword v14, v11, {S(R1)}, 0 offen sc1
            s_waitcnt vmcnt(0)
            {flag_test()}
            s_cbranch_vccz L_p_ok
            s_add_u32 s{sSPIN}, s{sSPIN}, 1
            s_cmp_lt_u32 s{sSPIN}, 0x10000
            s_cbranch_scc0 L_p_ok
            s_sleep 1
            s_branch L_p_lp
            """)
        at(c.flag_at, [("f", setflag)])
        at(c.poll_at, [("v", f"buffer_load_dword v14, v11, {S(R1)}, 0 offen sc1", 'poll')])
        at(c.check_at, [("f", check)])
        for a in range(1, 4):
            at(max(c.check_at, c.pl_at[a - 1]), [("v", f"buffer_load_dwordx4 {vr(PR + 16*a + 4*k)}, v10, {S(R0)}, s{sH + a} offen offset:{k*1024} sc1", f"P{2*a + (k >> 1)}") for k in range(4)])
        tail = f"""s_add_u32 s{sTAG}, s{sE}, 3
        s_lshl_b32 s{sT2}, s{sKG}, 12
        s_add_u32 s{sT0}, s{sKG}, 1
        s_and_b32 s{sT0}, s{sT0}, 3
        s_lshl_b32 s{sT1}, s{sT0}, 14
        s_add_u32 s{sSND + 1}, s{sT1}, s{sT2}
        s_lshl_b32 s{sH + 5}, s{sT0}, 12
        s_add_u32 s{sT0}, s{sKG}, 2
        s_and_b32 s{sT0}, s{sT0}, 3
        s_lshl_b32 s{sT1}, s{sT0}, 14
        s_add_u32 s{sSND + 2}, s{sT1}, s{sT2}
        s_lshl_b32 s{sH + 6}, s{sT0}, 12
        s_add_u32 s{sT0}, s{sKG}, 3
        s_and_b32 s{sT0}, s{sT0}, 3
        s_lshl_b32 s{sT1}, s{sT0}, 14
        s_add_u32 s{sSND + 3}, s{sT1}, s{sT2}
        s_lshl_b32 s{sH + 7}, s{sT0}, 12
        s_lshl_b32 s{sT2}, s{sKG}, 14
        s_add_u32 s{sH + 5}, s{sH + 5}, s{sT2}
        s_add_u32 s{sH + 6}, s{sH + 6}, s{sT2}
        s_add_u32 s{sH + 7}, s{sH + 7}, s{sT2}
        s_bitcmp1_b32 s{sKG}, 0
        s_cselect_b64 s[{sM0}:{sM0+1}], -1, 0
        s_bitcmp1_b32 s{sKG}, 1
        s_cselect_b64 s[{sM1}:{sM1+1}], -1, 0
        v_and_b32 v6, 15, v1
        v_mul_u32_u24 v6, 2304, v6
        v_lshrrev_b32 v7, 4, v1
        v_lshl_add_u32 v6, v7, 3, v6
        s_lshl_b32 s{sT0}, s{sHP}, 8
        s_lshl_b32 s{sT1}, s{sKG}, 6
        s_add_u32 s{sT0}, s{sT0}, s{sT1}
        v_add_u32 v7, s{sT0}, v6
        s_lshr_b32 s{sT0}, s{sKG}, 1
        s_mul_i32 s{sT0}, s{sT0}, 36864
        s_and_b32 s{sT1}, s{sKG}, 1
        s_lshl_b32 s{sT1}, s{sT1}, 2
        s_add_u32 s{sT0}, s{sT0}, s{sT1}
        s_lshl_b32 s{sT1}, s{sHP}, 5
        s_add_u32 s{sT0}, s{sT0}, s{sT1}
        s_add_u32 s{sT0}, s{sT0}, 1024
        v_add_u32 v6, s{sT0}, v6
        s_mov_b32 s{sU}, 36864
        v_and_b32 v8, 3, v1
        v_min_u32 v8, 2, v8
        v_add_u32 v8, 1, v8
        v_add_u32 v8, s{sKG}, v8
        v_and_b32 v8, 3, v8
        v_lshlrev_b32 v8, 12, v8
        v_add_u32 v8, {2048 + 1020}, v8"""
        tl = [x.strip() for x in tail.split("\n")]
        tops = []
        for x in tl:
            if x.startswith("s_cselect"): tops[-1] = ("s", tops[-1][1] + "\n" + x)
            else: tops.append(("s", x))
        at(42, tops)
        nin = [("s", f"v_cvt_pk_bf16_f32 v{NA + i}, v{NA + 2*i}, v{NA + 2*i + 1}") for i in range(4)]
        nin += [("s", f"v_cndmask_b32 v{NA + 4 + i}, v{NA + i}, v{NA + ((i + 1) & 3)}, s[{sM0}:{sM0+1}]") for i in range(4)]
        nin += [("s", f"v_cndmask_b32 v{NA + i}, v{NA + 4 + i}, v{NA + 4 + ((i + 2) & 3)}, s[{sM1}:{sM1+1}]") for i in range(4)]
        at(66, nin)
        def send(Tp):
            d = PT[Tp]; ops = []
            for i in range(8):
                ops.append(("s", f"v_cvt_pk_bf16_f32 v{d + i + i // 3}, v{d + 2*i}, v{d + 2*i + 1}"))
                if i in (2, 5): ops.append(("s", f"v_mov_b32 v{d + i + i // 3 + 1}, s{sTAG}"))
                if i == 7: ops += [("s", f"v_mov_b32 v{d + 10}, v{NA + Tp}"), ("s", f"v_mov_b32 v{d + 11}, s{sTAG}")]
                if i in (2, 5, 7):
                    ops.append(("v", f"buffer_store_dwordx4 {vr(d + 4*(i // 3))}, v10, {S(R3)}, s{sSND + Tp} offen offset:{1024*(i // 3)} sc1", None))
            return ops
        for Tp in range(1, 4): at(66 + 2*Tp, send(Tp))
        q = []
        def s2(N, rt):
            hd, nt = N // 9, NTO[N % 9]
            if hd >= 2 and N % 9 == 0 and rt == 0:
                self.pt(f'P{hd}q'); e.wait(vm=f"P{hd}"); self.pt(f'P{hd}')
            acc = vr(PA(nt, rt))
            e(f"{MF} {acc}, {vr(VWB + 4*(N & 1))}, {vr(PR + 8*hd + 4*rt)}, {acc if hd else 0}")
        def cvt(N, k): e(f"v_cvt_pk_bf16_f32 v{VWB + 4*(N & 1) + k}, v{VWA + 8*(N & 1) + 2*k}, v{VWA + 8*(N & 1) + 2*k + 1}")
        ORD = ['M0', 'M1', 'Sa', 'M2', 'M3', 'M4', 'M5', 'Sb', 'M6', 'M7']
        for N in range(74):
            hd = N // 9
            q += soft.get(N, [])
            for slot, nm in enumerate(ORD):
                used = 0
                if nm[0] == 'S':
                    rt = int(nm == 'Sb')
                    if N >= 2: s2(N - 2, rt)
                    if 1 <= N <= 72: cvt(N - 1, 2*rt); cvt(N - 1, 2*rt + 1); used += 2
                elif N < 72:
                    m = int(nm[1]); g, kt = 4*N + (m >> 1), m & 1
                    if N % 9 == 0 and kt == 0: e.wait(lg=f"vf{hd}_{g & 3}")
                    if m in (0, 4): e.wait(lg=f"a{g + 1}")
                    acc = vr(VWA + 8*(N & 1) + 4*kt)
                    e(f"{MF} {acc}, {vr(VF + 8*(g & 3) + 4*kt)}, {vr(FA + 4*(g & 7))}, {acc if g & 3 else 0}")
                    for op in fixed.get((N, slot), []): emit_op(op); used += 1
                    if g + D < 288: pread(g + D, kt); used += 1
                    if N % 9 == 8 and hd < 7: vread(hd + 1, g & 3, kt); used += 1
                    if m in (3, 7): used += 1
                else: continue
                while used < 2 and q:
                    emit_op(q.pop(0)); used += 1
        for op in q: emit_op(op)
        self.pt('p2end')
        RB = 104
        e(f"s_mov_b32 s{sSPIN}, 0")
        if c.pts and 'ack' in c.pts: e("s_waitcnt vmcnt(0)"); self.pt('ack')
        e(f"""
        L_fin_lp:
        buffer_load_dword v9, v8, {S(R3)}, s{sT2} offen sc1
        s_add_u32 s{sSPIN}, s{sSPIN}, 1
        s_cmp_lt_u32 s{sSPIN}, 0x10000
        s_waitcnt vmcnt(0)
        s_cbranch_scc0 L_fin_full
        v_cmp_ne_u32 vcc, s{sTAG}, v9
        s_cbranch_vccnz L_fin_lp
        L_fin_full:
        """)
        self.pt('lp')
        for a in range(1, 4):
            for k in range(3): e(f"buffer_load_dwordx4 {vr(RB + 12*(a - 1) + 4*k)}, v10, {S(R3)}, s{sH + 4 + a} offen offset:{1024*k} sc1")
        for n in range(9):
            e(f"s_waitcnt vmcnt({8 - n})")
            e(f"v_xor_b32 v9, s{sTAG}, v{RB + 3}" if n == 0 else f"v_bitop3_b32 v9, v{RB + 4*n + 3}, s{sTAG}, v9 bitop3:0xbe")
        e(f"""
        v_cmp_ne_u32 vcc, 0, v9
        s_cmp_lt_u32 s{sSPIN}, 0x10000
        s_cbranch_scc0 L_fin_ok
        s_cbranch_vccnz L_fin_lp
        L_fin_ok:
        """)
        self.pt('c2')
        e(f"""
        s_cmp_eq_u32 s{sOWN}, 0
        s_cbranch_scc0 L_noep
        s_add_u32 s{sT1}, s{sE}, 4
        v_mov_b32 v15, s{sT1}
        buffer_store_dword v15, v13, {S(R2)}, 0 offen sc1
        L_noep:
        s_mov_b32 s{sT0}, 0xffff0000
        v_lshlrev_b32 v100, 16, v{NA}
        v_and_b32 v101, s{sT0}, v{NA}
        """)
        T = 144
        for a in range(3):
            for hf in range(2):
                for i in range(4*hf, 4*hf + 4):
                    d = RB + 12*a + i + i // 3
                    e(f"v_lshlrev_b32 v{T + 2*(i&3)}, 16, v{d}\nv_and_b32 v{T + 1 + 2*(i&3)}, s{sT0}, v{d}")
                for i in range(4*hf, 4*hf + 4):
                    e(f"v_add_f32 v{PT[0] + 2*i}, v{PT[0] + 2*i}, v{T + 2*(i&3)}\nv_add_f32 v{PT[0] + 2*i + 1}, v{PT[0] + 2*i + 1}, v{T + 1 + 2*(i&3)}")
            d = RB + 12*a + 10
            e(f"v_lshlrev_b32 v{T}, 16, v{d}\nv_and_b32 v{T + 1}, s{sT0}, v{d}\nv_add_f32 v100, v100, v{T}\nv_add_f32 v101, v101, v{T + 1}")
        for i in range(8): e(f"v_cvt_pk_bf16_f32 v{T + i}, v{PT[0] + 2*i}, v{PT[0] + 2*i + 1}")
        e("v_cvt_pk_bf16_f32 v100, v100, v101")
        for u in range(2):
            for rt in range(2):
                e(f"buffer_store_dwordx2 {vr(T + 4*u + 2*rt, 2)}, v7, {S(R4)}, {'s%d' % sU if rt else 0} offen offset:{32*u}")
        e(f"buffer_store_dword v100, v6, {S(R4)}, 0 offen")
        self.pt('end')
        self.dump(False)
        e("s_endpgm")
        for b in self.ool: e(b)

    def build(self):
        self.entry(); self.helper(); self.compute()
        self.e("L_end:\ns_endpgm")
        lines, added = insert_nops(self.e.L)
        hdr = open("cdna_kernels/" + NAME + ".s.ref").read().split("\n")
        top = [l for l in hdr if l.startswith(";") and "@launch" not in l]
        out = "\n".join(top) + f"\n; @launch grid=(256,1,1) block=(512,1,1) lds={LDS_BYTES}\n"
        if self.c.pts: out += "; PTS " + " ".join(self.ptorder) + "\n"
        out += f""".amdgcn_target "amdgcn-amd-amdhsa--gfx950"
.text
.globl {NAME}_kernel
.p2align 8
.type {NAME}_kernel,@function
{NAME}_kernel:
"""
        out += "\n".join((l if l.endswith(":") else "    " + l) for l in lines)
        out += f"""
.section .rodata,"a"
.p2align 6
.amdhsa_kernel {NAME}_kernel
  .amdhsa_next_free_vgpr 256
  .amdhsa_next_free_sgpr 102
  .amdhsa_accum_offset 256
  .amdhsa_group_segment_fixed_size 0
  .amdhsa_kernarg_size 104
  .amdhsa_user_sgpr_count 2
  .amdhsa_user_sgpr_kernarg_segment_ptr 1
  .amdhsa_system_sgpr_workgroup_id_x 1
.end_amdhsa_kernel
"""
        return out, added

def make(path, **kw):
    cfg = Cfg()
    for k, v in kw.items():
        assert hasattr(cfg, k), k
        setattr(cfg, k, v)
    txt, added = G(cfg).build()
    open(path, "w").write(txt)
    return added

if __name__ == "__main__":
    print("nops added", make("cdna_kernels/" + NAME + ".s"))
```

```python
import sys, copy
from asmlib import E, insert_nops

NAME = "concat_heads__mha_block_cached__mha_block_cached__near_ridge"

class Cfg:
    pol_x = ""; pol_wq = ""; pol_k = "nt"; pol_v = ""; pol_wo = ""; pol_wot = ""
    bursts = [4, 8, 12, 16]
    nstag = 2; sstep = 2
    t_split = 3; t0_at = 10; t_lead = 3; t1_at = 21
    wo0_at = 14
    pl_at = [0, 20, 38]
    nstart = 4
    fin = 'light'
    hsleep = 1
    dist = 6
    flag_at = 2; poll_at = 8; check_at = 12
    free_ds = 16
    pol_out = ''
    wo2_at = 21
    tail_at = 42
    codepf = True
    freerun = False
    diag = False; pts = None; dbgout = None; clk = False; fine = False; nodma = False
    ws_o = 0; ws_p = 16 << 20; ws_f = 32 << 20; ws_e = 40 << 20; ws_t = 41 << 20; ws_s = 48 << 20

KB = 1024
WS_ = [0, 32*KB, 80*KB, 48*KB, 64*KB, 112*KB]
XS_ = [16*KB, 96*KB, 128*KB]
FULLA, FREEA, FREEB = 144*KB, 145*KB, 146*KB
KR, KR1, VR = 80*KB, 48*KB, 112*KB
WOS = [0, 36*KB, 72*KB]
LDS_BYTES = 163840
HORD = [(0, 0), (0, 1), (1, 0), (1, 1), (2, 0), (2, 1), (3, 0), (3, 1)]
NTO = [8, 2, 3, 4, 5, 6, 7, 0, 1]

sW, sBLK, sKG, sBG, sHP, sWL, sB = 4, 5, 6, 7, 8, 9, 10
pX, pK, pV, pWQ, pWO, pOUT, pDBG, pWS = 44, 46, 48, 50, 52, 36, 38, 40
R0, R1, R2, R3, R4, R5 = 56, 60, 64, 68, 72, 96
sT0, sT1, sT2 = 3, 11, 12
sSTG, sE, sXO, sFV = 13, 14, 15, 15
RT, sFM, sHV = 20, 24, 25
sH = 76
sKB, sVB, sC, sSPIN, sOWN, sSND, sU, sRHO = 84, 85, 86, 87, 88, 89, 93, 94
sTAG, sM0, sM1 = 53, 48, 50

def srd(e, R, ptr, off, records):
    if off is None: e(f"s_mov_b32 s{R}, s{ptr}\ns_mov_b32 s{R+1}, s{ptr+1}")
    else: e(f"s_add_u32 s{R}, s{ptr}, s{off}\ns_addc_u32 s{R+1}, s{ptr+1}, 0")
    e(f"s_mov_b32 s{R+2}, {records}\ns_mov_b32 s{R+3}, 0x00020000")
def S(R): return f"s[{R}:{R+3}]"
def vr(a, n=4): return f"v[{a}:{a+n-1}]" if n > 1 else f"v{a}"
MF = "v_mfma_f32_16x16x32_bf16"

class G:
    def __init__(self, cfg):
        self.c = cfg; self.e = E(); self.ool = []; self.uid = 0; self.ptorder = []
    def U(self):
        self.uid += 1; return self.uid
    def clock(self): return f"s_mem{'' if self.c.clk else 'real'}time s[100:101]"
    def pt(self, label):
        if not self.c.pts or label not in self.c.pts: return
        k = len(self.ptorder); self.ptorder.append(label); assert k < 20
        if k: self.e(f"s_mov_b32 s{16 + k - 1}, s100")
        self.e(self.clock())
    def lane_stamp(self, k):
        if self.c.diag and (self.c.fine or k == 63):
            self.e(f"{self.clock()}\ns_waitcnt lgkmcnt(0)\nv_writelane_b32 v30, s100, {k}")
    def dump(self, helper):
        e = self.e; c = self.c
        if not c.diag: return
        e("s_waitcnt vmcnt(0) lgkmcnt(0)")
        if helper:
            if c.dbgout is not None: return
            e(f"s_lshl_b32 s{sT0}, s2, 3\ns_add_u32 s{sT0}, s{sT0}, s{sW}\ns_lshl_b32 s{sT0}, s{sT0}, 8\ns_add_u32 s{sT0}, s{sT0}, {c.ws_s + (1 << 20)}")
            srd(e, R0, pWS, sT0, 256)
            e(f"v_lshlrev_b32 v26, 2, v1\nbuffer_store_dword v30, v26, {S(R0)}, 0 offen\ns_waitcnt vmcnt(0)")
            return
        n = len(self.ptorder)
        e(f"s_mov_b32 s{16 + n - 1}, s100")
        if c.dbgout is not None:
            e(f"s_cmp_eq_u32 s2, {c.dbgout}\ns_cbranch_scc0 L_nodbg\ns_cmp_eq_u32 s{sW}, 0\ns_cbranch_scc0 L_nodbg")
            srd(e, R0, pDBG, None, 256)
            for k in range(n):
                e(f"s_sub_u32 s{sT0}, s{16 + k}, s16\nv_mov_b32 v110, s{sT0}\nbuffer_store_dword v110, off, {S(R0)}, 0 offset:{4*k}")
            e("s_waitcnt vmcnt(0)\nL_nodbg:")
            return
        e(f"s_lshl_b32 s{sT0}, s2, 3\ns_add_u32 s{sT0}, s{sT0}, s{sW}\ns_lshl_b32 s{sT0}, s{sT0}, 7\ns_add_u32 s{sT0}, s{sT0}, {c.ws_s}")
        srd(e, R0, pWS, sT0, 128)
        for k in range(n):
            e(f"v_mov_b32 v110, s{16 + k}\nbuffer_store_dword v110, off, {S(R0)}, 0 offset:{4*k}")
        e("s_waitcnt vmcnt(0)")

    def entry(self):
        self.e(f"""
        s_cmp_ge_u32 s2, 256
        s_cbranch_scc1 L_end
        s_load_dwordx16 s[16:31], s[0:1], 0
        s_load_dwordx8 s[32:39], s[0:1], 64
        s_load_dwordx2 s[40:41], s[0:1], 96
        v_lshrrev_b32 v2, 6, v0
        v_and_b32 v1, 63, v0
        v_readfirstlane_b32 s{sW}, v2
        s_and_b32 s{sT0}, s2, 7
        s_lshr_b32 s{sBLK}, s{sT0}, 2
        s_and_b32 s{sKG}, s2, 3
        s_lshr_b32 s{sBG}, s2, 5
        s_lshr_b32 s{sHP}, s2, 3
        s_and_b32 s{sHP}, s{sHP}, 3
        s_and_b32 s{sWL}, s{sW}, 3
        s_lshl_b32 s{sB}, s{sBG}, 2
        s_add_u32 s{sB}, s{sB}, s{sWL}
        s_cmp_eq_u32 s{sBLK}, 0
        s_waitcnt lgkmcnt(0)
        s_cselect_b64 s[{pX}:{pX+1}], s[16:17], s[26:27]
        s_cselect_b64 s[{pK}:{pK+1}], s[18:19], s[28:29]
        s_cselect_b64 s[{pV}:{pV+1}], s[20:21], s[30:31]
        s_cselect_b64 s[{pWQ}:{pWQ+1}], s[22:23], s[32:33]
        s_cselect_b64 s[{pWO}:{pWO+1}], s[24:25], s[34:35]
        s_cmp_lt_u32 s{sW}, 4
        s_cbranch_scc1 L_compute
        """)

    def vm(self, txt, tag=None):
        self.e.vmem(txt if not self.c.nodma else "s_nop 0", tag)
    def dma4(self, R, voffs, m0, soff, pol, tag, pre=None):
        e = self.e
        e(f"s_add_u32 m0, s{m0[0]}, {m0[1]}")
        if pre: e(pre)
        for j in range(4):
            self.vm(f"buffer_load_dwordx4 v{voffs[j]}, {S(R)}, s{soff} offen offset:{j*1024} {pol} lds", tag)
    def hs(self, j):
        c = self.c
        if j % 2 == 0:
            pre = f"s_mov_b32 s{sXO}, 0\ns_mov_b32 s{sSTG}, 0" if j == 0 else \
                  f"s_add_u32 s{sRHO}, s{sRHO}, 1\ns_lshl_b32 s{sXO}, s{sRHO}, 7\ns_lshl_b32 s{sSTG}, s{sRHO}, 19\ns_and_b32 s{sRHO}, s{sRHO}, 7"
            self.dma4(R5, [160, 161, 162, 163], (sOWN, XS_[(j >> 1) % 3]), sXO, c.pol_x, None, pre)
            self.dma4(R0, [4, 5, 6, 7], (sOWN, WS_[j % 6]), sSTG, c.pol_wq, None)
        else:
            self.dma4(R0, [4, 5, 6, 7], (sOWN, WS_[j % 6]), sSTG, c.pol_wq, None, f"s_add_u32 s{sSTG}, s{sSTG}, 262144")
    def sflag(self, val):
        self.e(f"s_mov_b32 m0, s{sFM}\ns_mov_b32 s{sT1}, {4*val}")
        self.e.vmem(f"buffer_load_dword off, {S(RT)}, s{sT1} lds", f"sf{val}")
    def publish(self, val):
        self.e.wait(vm="sf18")
        self.e(f"s_waitcnt lgkmcnt(0)\nv_mov_b32 v28, {val}\nds_max_u32 v27, v28")
        self.lane_stamp(val)
    def kv_burst(self, g):
        e = self.e; c = self.c
        for a in range(2):
            if g < 2: e(f"s_mov_b32 s{sU}, {g*8192 + a*4096}")
            else: e(f"s_add_u32 s{sU}, s{sHV + g - 2}, {a*4096}")
            for j in range(4):
                self.vm(f"buffer_load_dwordx4 {vr(32 + 32*g + 16*a + 4*j)}, v{8 + j}, {S(R1 if g < 2 else R2)}, s{sU} offen offset:{j*1024} {c.pol_k if g < 2 else c.pol_v}", f"kv{g}")
    def kv_write(self, g):
        self.e.wait(vm=f"kv{g}")
        for p in range(8):
            self.e(f"ds_write_b128 v{19 if g < 2 else 18}, {vr(32 + 32*g + 4*p)} offset:{[KR - KR1, 0, 0, 0][g] + p*1024}")
    def wo(self, hd):
        c = self.c; slot = WOS[hd % 3]
        self.lane_stamp(50 + hd)
        self.dma4(R3, [13, 14, 15, 16], (sKB, slot), sH + hd, c.pol_wo, f"wo{hd}")
        self.dma4(R3, [13, 14, 15, 16], (sKB, slot + 4096), sT1, c.pol_wo, f"wo{hd}", f"s_add_u32 s{sT1}, s{sH + hd}, 18432")
        self.e(f"s_add_u32 m0, s{sVB}, {slot + 32768}")
        self.vm(f"buffer_load_dwordx4 v17, {S(R3)}, s{sH + hd} offen {c.pol_wo} lds", f"wo{hd}")
    def vdma(self, hd):
        self.lane_stamp(40 + hd)
        self.dma4(R2, [8, 9, 10, 11], (sKB, VR), sHV + hd, self.c.pol_v, None)
        self.dma4(R2, [8, 9, 10, 11], (sKB, VR + 4096), sT1, self.c.pol_v, None, f"s_add_u32 s{sT1}, s{sHV + hd}, 4096")
    def touch(self, hds):
        if not hds: return
        u = self.U()
        self.e(f"s_cmp_eq_u32 s{sW}, 7\ns_cbranch_scc0 L_nt{u}")
        for hd in hds:
            self.e(f"buffer_load_dword v24, v25, {S(R4)}, s{sH+hd} offen {self.c.pol_wot}" if not self.c.nodma else "s_nop 0")
        self.e(f"L_nt{u}:")
    def fsrc(self, thr):
        return "ds_read_b32 v29, v26" + (f" offset:{FREEB - FREEA}" if self.c.free_ds <= thr <= 20 else "")
    def need_free(self, thr):
        e = self.e
        if thr <= self.known_free: return
        self.known_free = thr
        if thr >= 21:
            assert not self.polled
            e("s_barrier"); return
        if self.c.freerun and thr < 16:
            self.polled = False; return
        u = self.U()
        if not self.polled: e(self.fsrc(thr))
        self.polled = False
        e(f"s_waitcnt lgkmcnt(0)\nv_cmp_gt_u32 vcc, {thr}, v29\ns_cbranch_vccnz L_fs{u}\nL_fo{u}:")
        self.hool.append(f"""
        L_fs{u}:
        s_mov_b32 s{sSPIN}, 0
        L_fl{u}:
        s_sleep {self.c.hsleep}
        {self.fsrc(thr)}
        s_add_u32 s{sSPIN}, s{sSPIN}, 1
        s_cmp_lt_u32 s{sSPIN}, 0x100000
        s_waitcnt lgkmcnt(0)
        s_cbranch_scc0 L_fo{u}
        v_cmp_gt_u32 vcc, {thr}, v29
        s_cbranch_vccnz L_fl{u}
        s_branch L_fo{u}
        """)
    def helper_body(self, off):
        e = self.e; c = self.c
        self.known_free = 0; self.polled = False; self.hool = []
        it = []
        for j in range(1, 18): it.append((max(0, j - 5 + (1 - (j & 1))), 0, 'hs', j))
        for g in range(4): it.append((c.bursts[g] + (off if c.bursts[g] < 15 else 0), 1, 'kv', g))
        if c.t0_at is not None:
            it.append((c.t0_at + (off if c.t0_at < 14 else 0), 2, 'touch', list(range(c.t_split))))
            if c.t1_at is None:
                for hd in range(c.t_split, 8): it.append((max(20, 20 + hd - c.t_lead), 2, 'touch', [hd]))
            else: it.append((c.t1_at + (off if c.t1_at < 14 else 0), 5, 'touch', list(range(c.t_split, 8))))
        it.append((max(14, c.wo0_at), 3, 'wo', 0))
        it += [(16, 0, 'kw', 0), (17, 0, 'kw', 1), (18, 4, 'vw', 0), (20, 0, 'wo', 1), (c.wo2_at, 1, 'wo', 2), (21, 0, 'vw', 1)]
        for hd in range(2, 8):
            it.append((20 + hd, 0, 'v', hd))
            if hd + 1 < 8: it.append((20 + hd, 1, 'wo', hd + 1))
        it.sort(key=lambda t: (t[0], t[1]))
        late21 = False
        for n, (thr, _, kind, arg) in enumerate(it):
            self.need_free(thr)
            nxt = it[n + 1][0] if n + 1 < len(it) else 0
            if 21 > nxt > self.known_free and kind in ('hs', 'wo'):
                e(self.fsrc(nxt)); self.polled = True
            if kind == 'hs':
                self.hs(arg); self.sflag(arg + 1)
                if c.fine and c.freerun and arg in (3, 5, 9, 13, 17): e('s_waitcnt vmcnt(0)'); self.lane_stamp(32 + arg // 4)
            elif kind == 'kv': self.kv_burst(arg)
            elif kind == 'touch': self.touch(arg)
            elif kind == 'kw':
                self.kv_write(arg); self.publish(19 + arg)
            elif kind == 'vw':
                self.kv_write(2 + arg)
                e.wait(vm=f"wo{arg}"); self.publish(21 + 2*arg)
                if arg == 1 and c.wo2_at < 21: self.sflag(24)
            elif kind == 'wo':
                self.wo(arg)
                if arg == 1: pass
                if arg >= 3 or (arg == 2 and c.wo2_at >= 21): self.sflag(20 + 2*arg)
            elif kind == 'v':
                assert f"wo{arg}" in e.vm.tags
                self.vdma(arg); self.sflag(21 + 2*arg)
        self.lane_stamp(63)
        self.dump(True)
        e("s_endpgm")
        for b in self.hool: e(b)
    def head_offsets(self, bases):
        for hd, (a, r) in enumerate(HORD):
            if r == 0: self.e(f"s_add_u32 s{sT0}, s{sHP}, {a}\ns_and_b32 s{sT0}, s{sT0}, 3\ns_lshl_b32 s{sT0}, s{sT0}, 1")
            else: self.e(f"s_add_u32 s{sT0}, s{sT0}, 1")
            for base, mul in bases: self.e(f"s_mul_i32 s{base + hd}, s{sT0}, {mul}")
    def helper(self):
        e = self.e; c = self.c
        e.vm.__init__('vmcnt', 63)
        e(f"""
        s_lshl_b32 s{sRHO}, s{sHP}, {1 if c.nstart == 8 else 0}
        s_add_u32 s{sRHO}, s{sRHO}, s{sBG}
        s_and_b32 s{sRHO}, s{sRHO}, {c.nstart - 1}
        s_mul_i32 s{sRHO}, s{sRHO}, {8 // c.nstart}
        s_lshr_b32 s{sT2}, s{sWL}, 1
        s_lshl_b32 s{sT0}, s{sKG}, 3
        s_lshl_b32 s{sT1}, s{sHP}, 1
        s_add_u32 s{sT0}, s{sT0}, s{sT1}
        s_add_u32 s{sT0}, s{sT0}, s{sT2}
        s_lshl_b32 s{sT0}, s{sT0}, 8
        s_and_b32 s{sT1}, s{sWL}, 1
        s_lshl_b32 s{sT1}, s{sT1}, 17
        s_add_u32 s{sT0}, s{sT0}, s{sT1}
        s_sub_u32 s{sT2}, 4718592, s{sT0}
        """)
        srd(e, R0, pWQ, sT0, f"s{sT2}")
        e(f"s_mul_i32 s{sT0}, s{sB}, 36864")
        srd(e, R5, pX, sT0, 36864)
        e(f"""
        s_lshl_b32 s{sOWN}, s{sWL}, 12
        v_lshrrev_b32 v20, 3, v1
        v_mul_u32_u24 v20, 1152, v20
        v_and_b32 v21, 7, v1
        v_lshrrev_b32 v22, 4, v1
        v_xor_b32 v21, v21, v22
        v_lshlrev_b32 v21, 4, v21
        v_add_u32 v160, v20, v21
        v_xor_b32 v21, 64, v21
        v_add_u32 v161, v20, v21
        v_add_u32 v162, 16384, v160
        v_add_u32 v163, 24576, v161
        v_add_u32 v161, 8192, v161
        v_bfe_u32 v23, v1, 2, 2
        v_lshlrev_b32 v21, 6, v22
        v_lshl_add_u32 v20, v23, 13, v21
        v_and_b32 v21, 3, v1
        v_lshl_add_u32 v4, v21, 4, v20
        v_add_u32 v5, 31744, v4
        v_xor_b32 v7, 32, v4
        v_add_u32 v6, 63488, v7
        v_add_u32 v7, 95232, v7
        """)
        self.hs(0)
        e(f"""
        v_mul_u32_u24 v26, 260, v21
        v_add_u32 v26, {FREEA}, v26
        s_lshl_b32 s{sFM}, s{sWL}, 8
        s_add_u32 s{sFM}, s{sFM}, {FULLA}
        v_lshl_add_u32 v27, v1, 2, s{sFM}
        s_lshl_b32 s{sT0}, s2, 8
        s_add_u32 s{sT0}, s{sT0}, {c.ws_t}
        """)
        srd(e, RT, pWS, sT0, 256)
        e(f"""
        s_lshl_b32 s{sT0}, s{sB}, 5
        s_lshl_b32 s{sT1}, s{sKG}, 3
        s_add_u32 s{sT0}, s{sT0}, s{sT1}
        s_lshl_b32 s{sT2}, s{sT0}, 13
        """)
        srd(e, R2, pV, sT2, 65536)
        e(f"s_lshl_b32 s{sT1}, s{sHP}, 14\ns_add_u32 s{sT2}, s{sT2}, s{sT1}")
        srd(e, R1, pK, sT2, 16384)
        e(f"""
        v_and_b32 v20, 15, v1
        v_xor_b32 v20, v20, v22
        v_lshlrev_b32 v20, 4, v20
        v_lshl_add_u32 v8, v22, 8, v20
        v_xor_b32 v9, 64, v8
        v_xor_b32 v10, 0x80, v8
        v_xor_b32 v11, 0xc0, v8
        s_lshl_b32 s{sKB}, s{sWL}, 13
        s_lshl_b32 s{sVB}, s{sWL}, 10
        s_add_u32 s{sT0}, s{sKB}, {KR1}
        v_lshl_add_u32 v19, v1, 4, s{sT0}
        v_add_u32 v18, {VR - KR1}, v19
        s_mul_i32 s{sT0}, s{sKG}, 1179648
        """)
        srd(e, R4, pWO, sT0, 1179648)
        e(f"""
        s_mul_i32 s{sT1}, s{sWL}, 36864
        s_add_u32 s{sT0}, s{sT0}, s{sT1}
        s_lshl_b32 s{sT1}, s{sHP}, 8
        s_add_u32 s{sT0}, s{sT0}, s{sT1}
        s_sub_u32 s{sT2}, 4718592, s{sT0}
        """)
        srd(e, R3, pWO, sT0, f"s{sT2}")
        e(f"""
        v_add_u32 v20, s{sKG}, v22
        v_and_b32 v20, 3, v20
        v_mul_u32_u24 v23, 1152, v23
        v_lshl_add_u32 v23, v20, 6, v23
        v_lshl_add_u32 v13, v21, 4, v23
        v_add_u32 v14, 3584, v13
        v_xor_b32 v16, 32, v13
        v_add_u32 v15, 7168, v16
        v_add_u32 v16, 10752, v16
        v_bfe_u32 v20, v1, 1, 2
        v_bfe_u32 v21, v1, 3, 1
        v_lshl_add_u32 v20, v21, 3, v20
        v_bfe_u32 v21, v1, 4, 1
        v_lshl_add_u32 v20, v21, 2, v20
        v_bfe_u32 v22, v1, 5, 1
        v_lshl_add_u32 v20, v22, 4, v20
        v_mul_u32_u24 v20, 1152, v20
        v_and_b32 v22, 1, v1
        v_lshl_add_u32 v20, v22, 4, v20
        s_mul_i32 s{sT0}, s{sHP}, 224
        s_sub_u32 s{sT0}, 1024, s{sT0}
        v_add_u32 v17, s{sT0}, v20
        s_lshl_b32 s{sT0}, s{sBG}, 4
        v_and_b32 v20, 15, v1
        v_add_u32 v20, s{sT0}, v20
        v_mul_u32_u24 v20, 1152, v20
        v_lshl_add_u32 v21, v21, 7, s{sT1}
        v_mov_b32 v22, 1024
        v_cmp_gt_u32 vcc, 32, v1
        v_cndmask_b32 v21, v22, v21, vcc
        v_add_u32 v25, v20, v21
        """)
        self.head_offsets([(sH, 147456), (sHV, 8192)])
        e("s_barrier")
        self.sflag(1)
        if c.nstag > 1:
            e(f"s_and_b32 s{sT0}, s{sBG}, {c.nstag - 1}")
            for o in range(1, c.nstag): e(f"s_cmp_eq_u32 s{sT0}, {o}\ns_cbranch_scc1 L_hv{o}")
        saved = copy.deepcopy(e.vm)
        for o in range(c.nstag):
            e.vm = copy.deepcopy(saved)
            if o: e(f"L_hv{o}:")
            self.helper_body(o * c.sstep)

    def compute(self):
        e = self.e; c = self.c
        e.vm.__init__('vmcnt', 63); e.lg.__init__('lgkmcnt', 15)
        ACC, FA, FB, D = 32, 160, 192, c.dist
        e("L_compute:")
        self.pt("entry")
        e(f"s_lshl_b32 s{sT0}, s2, 8\ns_add_u32 s{sT0}, s{sT0}, {c.ws_t}")
        srd(e, R5, pWS, sT0, 256)
        e(f"v_lshlrev_b32 v13, 2, v1")
        e.vmem(f"buffer_store_dword v1, v13, {S(R5)}, 0 offen sc1", 'tab')
        e(f"v_and_b32 v16, 31, v1\nv_lshlrev_b32 v13, 2, v16")
        e(f"""
        s_lshl_b32 s{sT0}, s{sBLK}, 5
        s_add_u32 s{sT2}, s{sT0}, s{sB}
        s_lshl_b32 s{sT0}, s{sT2}, 7
        s_add_u32 s{sT0}, s{sT0}, {c.ws_e}
        """)
        srd(e, R2, pWS, sT0, 128)
        if c.codepf:
            e(f"""
            s_getpc_b64 s[90:91]
            L_pc:
            s_lshr_b32 s{sT0}, s2, 3
            s_lshl_b32 s{sT0}, s{sT0}, 2
            s_add_u32 s{sT0}, s{sT0}, s{sWL}
            s_lshl_b32 s{sT0}, s{sT0}, 9
            v_and_b32 v17, 3, v1
            v_lshl_add_u32 v17, v17, 7, s{sT0}
            v_min_u32 v17, L_end - {NAME}_kernel, v17
            s_sub_u32 s90, s90, L_pc - {NAME}_kernel
            s_subb_u32 s91, s91, 0
            v_mov_b32 v19, s91
            v_add_co_u32 v18, vcc, s90, v17
            v_addc_co_u32 v19, vcc, 0, v19, vcc
            """)
            e.vmem("global_load_dword v28, v[18:19], off", 'code')
        e.vmem(f"buffer_load_dword v14, off, {S(R2)}, 0 sc1", 'epoch')
        e(f"""
        v_and_b32 v21, 3, v1
        v_mul_u32_u24 v22, 260, v21
        v_add_u32 v22, {FULLA}, v22
        s_lshl_b32 s{sT0}, s{sWL}, 8
        s_add_u32 s{sT0}, s{sT0}, {FREEA}
        v_lshl_add_u32 v23, v1, 2, s{sT0}
        s_mov_b32 m0, s{sT0}
        v_mov_b32 v15, 0
        ds_write_b32 v23, v15
        v_add_u32 v19, {FULLA - FREEA}, v23
        ds_write_b32 v19, v15
        v_add_u32 v23, {FREEB - FREEA}, v23
        ds_write_b32 v23, v15
        s_lshl_b32 s{sT0}, s{sT2}, 11
        s_add_u32 s{sT0}, s{sT0}, {c.ws_f}
        """)
        srd(e, R1, pWS, sT0, 2048)
        e(f"""
        s_lshl_b32 s{sOWN}, s{sKG}, 2
        s_add_u32 s{sOWN}, s{sOWN}, s{sHP}
        s_lshl_b32 s{sOWN}, s{sOWN}, 7
        s_lshl_b32 s{sT0}, s{sT2}, 16
        s_lshl_b32 s{sT1}, s{sKG}, 14
        s_add_u32 s{sT0}, s{sT0}, s{sT1}
        s_add_u32 s{sT0}, s{sT0}, {c.ws_o}
        """)
        srd(e, R0, pWS, sT0, 16384)
        e(f"""
        s_lshl_b32 s{sT0}, s{sT2}, 2
        s_add_u32 s{sT0}, s{sT0}, s{sHP}
        s_lshl_b32 s{sT0}, s{sT0}, 16
        s_add_u32 s{sT0}, s{sT0}, {c.ws_p}
        """)
        srd(e, R3, pWS, sT0, 65536)
        e(f"""
        s_mul_i32 s{sT0}, s{sB}, 73728
        s_mul_i32 s{sT1}, s{sBLK}, 1152
        s_add_u32 s{sT0}, s{sT0}, s{sT1}
        s_sub_u32 s{sT1}, 2359296, s{sT0}
        """)
        srd(e, R4, pOUT, sT0, f"s{sT1}")
        e(f"""
        v_lshrrev_b32 v17, 4, v1
        v_and_b32 v18, 15, v1
        v_bfe_u32 v19, v1, 2, 2
        v_lshlrev_b32 v19, 6, v19
        v_and_b32 v20, 1, v17
        v_lshl_add_u32 v19, v20, 5, v19
        v_lshl_add_u32 v19, v21, 3, v19
        v_lshl_add_u32 v2, v17, 11, v19
        v_lshrrev_b32 v19, 5, v1
        v_lshlrev_b32 v19, 9, v19
        v_lshl_add_u32 v3, v16, 3, v19
        v_lshrrev_b32 v19, 1, v18
        v_xor_b32 v19, v19, v17
        v_lshlrev_b32 v19, 4, v19
        v_lshl_add_u32 v19, v18, 7, v19
        s_lshl_b32 s{sT0}, s{sWL}, 12
        v_add_u32 v6, s{sT0}, v19
        v_lshrrev_b32 v19, 1, v17
        v_xor_b32 v19, v19, v18
        v_lshlrev_b32 v19, 4, v19
        v_lshl_add_u32 v19, v18, 8, v19
        v_lshl_add_u32 v19, v20, 3, v19
        s_lshl_b32 s{sT0}, s{sWL}, 13
        s_add_u32 s{sKB}, s{sT0}, {KR1}
        s_add_u32 s{sVB}, s{sT0}, {VR}
        v_add_u32 v9, s{sKB}, v19
        v_xor_b32 v19, v17, v18
        v_lshlrev_b32 v19, 4, v19
        v_lshl_add_u32 v19, v18, 8, v19
        v_add_u32 v12, s{sVB}, v19
        v_lshlrev_b32 v10, 4, v1
        s_lshl_b32 s{sT0}, s{sKG}, 9
        v_lshl_add_u32 v11, v21, 7, s{sT0}
        s_mov_b32 s{sC}, 0x3e0293ee
        """)
        for a in range(4): e(f"s_add_u32 s{sT0}, s{sHP}, {a}\ns_and_b32 s{sT0}, s{sT0}, 3\ns_lshl_b32 s{sH + a}, s{sT0}, 12")
        e.wait(vm='tab')
        e("s_waitcnt lgkmcnt(0)\ns_barrier")

        def fread(): e.ds("ds_read_b32 v21, v22", "full")
        def fcmp(val): e.wait(lg="full"); e(f"v_cmp_gt_u32 vcc, {val}, v21")
        def fbranch(val):
            if c.freerun and 1 < val <= 18: return
            u = self.U()
            e(f"s_cbranch_vccnz L_cs{u}\nL_co{u}:")
            self.ool.append(f"""
            L_cs{u}:
            s_mov_b32 s{sSPIN}, 0
            L_cl{u}:
            ds_read_b32 v21, v22
            s_add_u32 s{sSPIN}, s{sSPIN}, 1
            s_cmp_lt_u32 s{sSPIN}, 0x100000
            s_waitcnt lgkmcnt(0)
            s_cbranch_scc0 L_co{u}
            v_cmp_gt_u32 vcc, {val}, v21
            s_cbranch_vccnz L_cl{u}
            s_branch L_co{u}
            """)
        def fcheck(val): fcmp(val); fbranch(val)
        def ffree(val): e(f"v_mov_b32 v20, {val}"); e.ds("ds_write_b32 v23, v20")
        FREE_DMA = ("v", f"buffer_load_dword off, {S(R5)}, s{sFV} lds", None)
        def emit_op(op):
            if op[0] == 's': e(op[1])
            elif op[0] == 'v': e.vmem(op[1], op[2])
            elif op[0] == 'd': e.ds(op[1], op[2])
            else: op[1]()
        fixed = {}
        def fx(pos, op):
            assert pos not in fixed, pos
            fixed[pos] = [op] if op else []

        def qread(g, jj):
            j, a = g >> 4, g & 15
            base = WS_[j % 6]; hi = base >= 64*KB
            e.ds(f"ds_read_b64_tr_b16 {vr(FA + 4*(g & 7) + 2*jj, 2)}, v{(16 if hi else 4) + (a & 1)} offset:{base - hi*64*KB + (a >> 3)*8192 + jj*1024 + ((a & 7) >> 1)*256}", f"a{g}")
        def xread_op(j, rt):
            base = XS_[(j >> 1) % 3]; hi = base >= 96*KB
            return ("d", f"ds_read_b128 {vr(FB + 8*(j & 1) + 4*rt)}, v{(18 if hi else 7) + (j & 1)} offset:{base - hi*96*KB + rt*2048}", f"x{j}")
        e(f"""
        v_mov_b32 v4, v2
        v_xor_b32 v5, 32, v2
        v_add_u32 v16, {64*KB}, v4
        v_add_u32 v17, {64*KB}, v5
        v_mov_b32 v7, v6
        v_xor_b32 v8, 64, v6
        v_add_u32 v18, {96*KB}, v7
        v_add_u32 v19, {96*KB}, v8
        """)
        fread(); fcheck(1)
        self.pt('hs0')
        emit_op(xread_op(0, 0)); emit_op(xread_op(0, 1))
        for g in range(D): qread(g, 0); qread(g, 1)
        offs = [o * c.sstep for o in range(c.nstag)]
        free_odd = {b + o for b in c.bursts + ([c.t0_at, c.t1_at or 0] if c.t0_at is not None else []) for o in offs} | {c.wo0_at}
        for p in range(1, 19):
            gB = 16*p - D
            if p >= c.free_ds:
                fx(2*(gB - 4), ("s", f"v_mov_b32 v20, {p}")); fx(2*(gB + 1), ("d", "ds_write_b32 v23, v20", None))
            elif p % 2 == 0 or p in free_odd:
                fx(2*(gB - 4), ("s", f"s_mov_b32 s{sFV}, {4*p}")); fx(2*(gB + 1), FREE_DMA)
            if p < 18:
                fx(2*(gB - 8), ("f", fread))
                fx(2*gB - 2, ("f", lambda p=p: fcmp(p + 1)))
                fx(2*gB, ("f", lambda p=p: (fbranch(p + 1), self.pt(f'hs{p}'))))
                fx(2*(gB + 2), xread_op(p, 0)); fx(2*(gB + 3), xread_op(p, 1))
        fx(41, ("f", lambda: (e.wait(vm='epoch'), e(f"v_readfirstlane_b32 s{sE}, v14"))))
        for g in range(288):
            j, a = g >> 4, g & 15
            for rt in range(2):
                if rt == 0 and a == 0: e.wait(lg=f"x{j}")
                if rt == 0 and g % 2 == 0: e.wait(lg=f"a{g + 1}")
                acc = vr(ACC + (2*a + rt)*4)
                e(f"{MF} {acc}, {vr(FA + 4*(g & 7))}, {vr(FB + 8*(j & 1) + 4*rt)}, {acc if j else 0}")
                for op in fixed.get(2*g + rt, []): emit_op(op)
                if g + D < 288: qread(g + D, rt)
        self.pt('qpend')
        QB = [32, 96]
        def qcvt(r):
            for s in range(4):
                for rt in range(2):
                    for u in range(2):
                        for q in range(2):
                            src = ACC + 64*r + 16*s + 8*u + 4*rt + 2*q
                            e(f"v_cvt_pk_bf16_f32 v{QB[r] + 8*s + 4*rt + 2*u + q}, v{src}, v{src+1}")
        SX, TM, PR, KF = [64, 128], [88, 152], 192, [FA, 208]
        fread()
        for k in range(8): e(f"v_xor_b32 v{24+k}, {32*k}, v9" if k else "v_mov_b32 v24, v9")
        qcvt(0)
        fcheck(19)
        self.pt('Kok')
        def kreads(r):
            for s in range(4):
                for kt in range(2):
                    for hf in range(2):
                        e.ds(f"ds_read_b64 {vr(KF[r] + 8*s + 4*kt + 2*hf, 2)}, v{24 + 2*s + hf} offset:{(KR - KR1)*(1 - r) + kt*4096}", f"k{r}{s}{kt}")
        kreads(0)
        fread()
        qcvt(1)
        def smfma(r):
            L = []
            for s in range(4):
                for kt in range(2):
                    for rt in range(2):
                        acc = vr(SX[r] + 8*kt + 4*rt)
                        L.append((f"k{r}{s}{kt}", f"{MF} {acc}, {vr(KF[r] + 8*s + 4*kt)}, {vr(QB[r] + 8*s + 4*rt)}, {acc if s else 0}"))
            return L
        def softmax(r):
            Sx, TMP = SX[r], TM[r]
            t0, t1, t2, t3 = TMP, TMP+1, TMP+2, TMP+3
            def val(rt, i): return Sx + 8*(i >> 2) + 4*rt + (i & 3)
            L = []
            for rt in range(2):
                t = TMP + 2*rt
                L += [f"v_max3_f32 v{t}, v{val(rt,0)}, v{val(rt,1)}, v{val(rt,2)}", f"v_max3_f32 v{t+1}, v{val(rt,3)}, v{val(rt,4)}, v{val(rt,5)}"]
            for rt in range(2): L.append(f"v_max3_f32 v{TMP + 2*rt}, v{TMP + 2*rt}, v{val(rt,6)}, v{val(rt,7)}")
            for rt in range(2): L.append(f"v_max_f32 v{TMP + 2*rt}, v{TMP + 2*rt}, v{TMP + 2*rt + 1}")
            xred = lambda op: [f"v_permlane32_swap_b32 v{t0}, v{t2}", f"{op} v{t0}, v{t0}, v{t2}", f"v_mov_b32 v{t1}, v{t0}",
                               f"v_permlane16_swap_b32 v{t0}, v{t1}", f"{op} v{t0}, v{t0}, v{t1}"]
            L += xred("v_max_f32")
            L += [f"v_mul_f32 v{t0}, s{sC}, v{t0}", f"v_mov_b32 v{t2}, v{t0}", f"v_permlane32_swap_b32 v{t0}, v{t2}"]
            for rt in range(2): L += [f"v_fma_f32 v{val(rt,i)}, v{val(rt,i)}, s{sC}, -v{TMP + 2*rt}" for i in range(8)]
            for rt in range(2): L += [f"v_exp_f32 v{val(rt,i)}, v{val(rt,i)}" for i in range(8)]
            for rt in range(2): L.append(f"v_pk_add_f32 {vr(TMP + 2*rt, 2)}, {vr(val(rt,0), 2)}, {vr(val(rt,2), 2)}")
            for k in (4, 6):
                for rt in range(2): L.append(f"v_pk_add_f32 {vr(TMP + 2*rt, 2)}, {vr(TMP + 2*rt, 2)}, {vr(val(rt,k), 2)}")
            L += [f"v_add_f32 v{t0}, v{t0}, v{t1}", f"v_add_f32 v{t2}, v{t2}, v{t3}"]
            L += xred("v_add_f32")
            L += [f"v_rcp_f32 v{t0}, v{t0}", f"v_mov_b32 v{t2}, v{t0}", f"v_permlane32_swap_b32 v{t0}, v{t2}"]
            for rt in range(2):
                L += [f"v_pk_mul_f32 {vr(val(rt,i), 2)}, {vr(val(rt,i), 2)}, {vr(TMP + 2*rt, 2)} op_sel_hi:[1,0]" for i in range(0, 8, 2)]
            for rt in range(2):
                L += [f"v_cvt_pk_bf16_f32 v{PR + 8*r + 4*rt + q}, v{val(rt,2*q)}, v{val(rt,2*q+1)}" for q in range(4)]
                L.append(f"buffer_store_dwordx4 {vr(PR + 8*r + 4*rt)}, v10, {S(R0)}, s{sH} offen offset:{(2*r + rt)*1024} sc1")
            return L
        def put(x): e.vmem(x, "pst") if x.startswith("buffer") else e(x)
        for n, (tag, m) in enumerate(smfma(0)):
            e.wait(lg=tag); e(m)
            if n == 7:
                fcheck(20); self.pt('K1ok'); kreads(1); ffree(20)
        A, B = softmax(0), softmax(1)
        for n, (tag, m) in enumerate(smfma(1)):
            e.wait(lg=tag); e(m)
            if n >= 3: put(A.pop(0)); put(A.pop(0))
        fread()
        while A or B:
            if B: put(B.pop(0))
            if A: put(A.pop(0))
        self.pt('sm')

        PT = [32, 48, 64, 80]; NA = 96; VF = 104; VWA = 136; VWB = 152
        def PA(nt, rt): return (NA + 4*rt) if nt == 8 else PT[nt >> 1] + 8*(nt & 1) + 4*rt
        def pread(g, jj):
            hd, nt, sg = g // 36, NTO[(g % 36) >> 2], g & 3
            base = WOS[hd % 3]
            if nt < 8:
                hi = base >= 64*KB
                a, off = (16 if hi else 4) + (nt & 1), base - hi*64*KB + sg*8192 + jj*1024 + (nt >> 1)*256
            else:
                hi = base > 0
                a, off = 18 + hi, base - hi*WOS[1] + sg*1024 + jj*256
            e.ds(f"ds_read_b64_tr_b16 {vr(FA + 4*(g & 7) + 2*jj, 2)}, v{a} offset:{off}", f"a{g}")
        def vread(hd, sg, kt):
            e.ds(f"ds_read_b128 {vr(VF + 8*sg + 4*kt)}, v{24 + sg} offset:{kt*4096}", f"vf{hd}_{sg}")
        for sg in range(4): e(f"v_xor_b32 v{24 + sg}, {64*sg}, v12" if sg else "v_mov_b32 v24, v12")
        e(f"v_add_u32 v18, 32768, v3\nv_add_u32 v19, {32768 + WOS[1]}, v3")
        fcheck(21)
        self.pt('h0')
        for sg in range(4): vread(0, sg, 0); vread(0, sg, 1)
        for g in range(D): pread(g, 0); pread(g, 1)
        e("s_barrier")
        fixed.clear(); soft = {}
        def at(N, ops): soft.setdefault(N, []).extend(ops)
        for hd in range(1, 8):
            N = 9*hd
            assert D == 6
            fx((N - 4, 0), ("d", "ds_read_b32 v21, v22", "full"))
            fx((N - 2, 0), ("f", lambda hd=hd: fcmp(20 + 2*hd + (hd == 1))))
            fx((N - 2, 1), ("f", lambda hd=hd: (fbranch(20 + 2*hd + (hd == 1)), self.pt(f'h{hd}'))))
            if hd > 1:
                fx((N - 2, 3), ("d", "ds_read_b32 v21, v22", "full"))
                fx((N - 2, 8), ("f", lambda hd=hd: fcmp(21 + 2*hd)))
                fx((N - 2, 9), ("f", lambda hd=hd: (fbranch(21 + 2*hd), self.pt(f'v{hd}'))))
            if hd < 7: fx((N, 0), ("s", "s_barrier"))
        def flag_test(): return f"s_add_u32 s{sT1}, s{sE}, 1\nv_cmp_ne_u32 vcc, s{sT1}, v14"
        def setflag():
            self.pt('fq'); e.wait(vm='pst'); self.pt('f')
            e(f"s_add_u32 s{sT1}, s{sE}, 1\nv_mov_b32 v15, s{sT1}")
            e.vmem(f"buffer_store_dword v15, v13, {S(R1)}, s{sOWN} offen sc1")
        def check():
            self.pt('cq'); e.wait(vm='poll'); e(flag_test()); e("s_cbranch_vccnz L_p_spin\nL_p_ok:"); self.pt('c')
            self.ool.append(f"""
            L_p_spin:
            s_mov_b32 s{sSPIN}, 0
            L_p_lp:
            buffer_load_dword v14, v11, {S(R1)}, 0 offen sc1
            s_waitcnt vmcnt(0)
            {flag_test()}
            s_cbranch_vccz L_p_ok
            s_add_u32 s{sSPIN}, s{sSPIN}, 1
            s_cmp_lt_u32 s{sSPIN}, 0x10000
            s_cbranch_scc0 L_p_ok
            s_sleep 1
            s_branch L_p_lp
            """)
        at(c.flag_at, [("f", setflag)])
        at(c.poll_at, [("v", f"buffer_load_dword v14, v11, {S(R1)}, 0 offen sc1", 'poll')])
        at(c.check_at, [("f", check)])
        for a in range(1, 4):
            at(max(c.check_at, c.pl_at[a - 1]), [("v", f"buffer_load_dwordx4 {vr(PR + 16*a + 4*k)}, v10, {S(R0)}, s{sH + a} offen offset:{k*1024} sc1", f"P{2*a + (k >> 1)}") for k in range(4)])
        tail = f"""s_add_u32 s{sTAG}, s{sE}, 3
        s_lshl_b32 s{sT2}, s{sKG}, 12
        s_add_u32 s{sT0}, s{sKG}, 1
        s_and_b32 s{sT0}, s{sT0}, 3
        s_lshl_b32 s{sT1}, s{sT0}, 14
        s_add_u32 s{sSND + 1}, s{sT1}, s{sT2}
        s_lshl_b32 s{sH + 5}, s{sT0}, 12
        s_add_u32 s{sT0}, s{sKG}, 2
        s_and_b32 s{sT0}, s{sT0}, 3
        s_lshl_b32 s{sT1}, s{sT0}, 14
        s_add_u32 s{sSND + 2}, s{sT1}, s{sT2}
        s_lshl_b32 s{sH + 6}, s{sT0}, 12
        s_add_u32 s{sT0}, s{sKG}, 3
        s_and_b32 s{sT0}, s{sT0}, 3
        s_lshl_b32 s{sT1}, s{sT0}, 14
        s_add_u32 s{sSND + 3}, s{sT1}, s{sT2}
        s_lshl_b32 s{sH + 7}, s{sT0}, 12
        s_lshl_b32 s{sT2}, s{sKG}, 14
        s_add_u32 s{sH + 5}, s{sH + 5}, s{sT2}
        s_add_u32 s{sH + 6}, s{sH + 6}, s{sT2}
        s_add_u32 s{sH + 7}, s{sH + 7}, s{sT2}
        s_bitcmp1_b32 s{sKG}, 0
        s_cselect_b64 s[{sM0}:{sM0+1}], -1, 0
        s_bitcmp1_b32 s{sKG}, 1
        s_cselect_b64 s[{sM1}:{sM1+1}], -1, 0
        v_and_b32 v6, 15, v1
        v_mul_u32_u24 v6, 2304, v6
        v_lshrrev_b32 v7, 4, v1
        v_lshl_add_u32 v6, v7, 3, v6
        s_lshl_b32 s{sT0}, s{sHP}, 8
        s_lshl_b32 s{sT1}, s{sKG}, 6
        s_add_u32 s{sT0}, s{sT0}, s{sT1}
        v_add_u32 v7, s{sT0}, v6
        s_lshr_b32 s{sT0}, s{sKG}, 1
        s_mul_i32 s{sT0}, s{sT0}, 36864
        s_and_b32 s{sT1}, s{sKG}, 1
        s_lshl_b32 s{sT1}, s{sT1}, 2
        s_add_u32 s{sT0}, s{sT0}, s{sT1}
        s_lshl_b32 s{sT1}, s{sHP}, 5
        s_add_u32 s{sT0}, s{sT0}, s{sT1}
        s_add_u32 s{sT0}, s{sT0}, 1024
        v_add_u32 v6, s{sT0}, v6
        s_mov_b32 s{sU}, 36864
        v_and_b32 v8, 3, v1
        v_min_u32 v8, 2, v8
        v_add_u32 v8, 1, v8
        v_add_u32 v8, s{sKG}, v8
        v_and_b32 v8, 3, v8
        v_lshlrev_b32 v8, 12, v8
        v_add_u32 v8, {2048 + 1020}, v8"""
        tl = [x.strip() for x in tail.split("\n")]
        tops = []
        for x in tl:
            if x.startswith("s_cselect"): tops[-1] = ("s", tops[-1][1] + "\n" + x)
            else: tops.append(("s", x))
        at(c.tail_at, tops)
        nin = [("s", f"v_cvt_pk_bf16_f32 v{NA + i}, v{NA + 2*i}, v{NA + 2*i + 1}") for i in range(4)]
        nin += [("s", f"v_cndmask_b32 v{NA + 4 + i}, v{NA + i}, v{NA + ((i + 1) & 3)}, s[{sM0}:{sM0+1}]") for i in range(4)]
        nin += [("s", f"v_cndmask_b32 v{NA + i}, v{NA + 4 + i}, v{NA + 4 + ((i + 2) & 3)}, s[{sM1}:{sM1+1}]") for i in range(4)]
        at(66, nin)
        def send(Tp):
            d = PT[Tp]; ops = []
            for i in range(8):
                ops.append(("s", f"v_cvt_pk_bf16_f32 v{d + i + i // 3}, v{d + 2*i}, v{d + 2*i + 1}"))
                if i in (2, 5): ops.append(("s", f"v_mov_b32 v{d + i + i // 3 + 1}, s{sTAG}"))
                if i == 7: ops += [("s", f"v_mov_b32 v{d + 10}, v{NA + Tp}"), ("s", f"v_mov_b32 v{d + 11}, s{sTAG}")]
                if i in (2, 5, 7):
                    ops.append(("v", f"buffer_store_dwordx4 {vr(d + 4*(i // 3))}, v10, {S(R3)}, s{sSND + Tp} offen offset:{1024*(i // 3)} sc1", None))
            return ops
        for Tp in range(1, 4): at(66 + 2*Tp, send(Tp))
        q = []
        def s2(N, rt):
            hd, nt = N // 9, NTO[N % 9]
            if hd >= 2 and N % 9 == 0 and rt == 0:
                self.pt(f'P{hd}q'); e.wait(vm=f"P{hd}"); self.pt(f'P{hd}')
            acc = vr(PA(nt, rt))
            e(f"{MF} {acc}, {vr(VWB + 4*(N & 1))}, {vr(PR + 8*hd + 4*rt)}, {acc if hd else 0}")
        def cvt(N, k): e(f"v_cvt_pk_bf16_f32 v{VWB + 4*(N & 1) + k}, v{VWA + 8*(N & 1) + 2*k}, v{VWA + 8*(N & 1) + 2*k + 1}")
        ORD = ['M0', 'M1', 'Sa', 'M2', 'M3', 'M4', 'M5', 'Sb', 'M6', 'M7']
        for N in range(74):
            hd = N // 9
            q += soft.get(N, [])
            for slot, nm in enumerate(ORD):
                used = 0
                if nm[0] == 'S':
                    rt = int(nm == 'Sb')
                    if N >= 2: s2(N - 2, rt)
                    if 1 <= N <= 72: cvt(N - 1, 2*rt); cvt(N - 1, 2*rt + 1); used += 2
                elif N < 72:
                    m = int(nm[1]); g, kt = 4*N + (m >> 1), m & 1
                    if N % 9 == 0 and kt == 0: e.wait(lg=f"vf{hd}_{g & 3}")
                    if m in (0, 4): e.wait(lg=f"a{g + 1}")
                    acc = vr(VWA + 8*(N & 1) + 4*kt)
                    e(f"{MF} {acc}, {vr(VF + 8*(g & 3) + 4*kt)}, {vr(FA + 4*(g & 7))}, {acc if g & 3 else 0}")
                    for op in fixed.get((N, slot), []): emit_op(op); used += 1
                    if g + D < 288: pread(g + D, kt); used += 1
                    if N % 9 == 8 and hd < 7: vread(hd + 1, g & 3, kt); used += 1
                    if m in (3, 7): used += 1
                else: continue
                while used < 2 and q:
                    emit_op(q.pop(0)); used += 1
        for op in q: emit_op(op)
        self.pt('p2end')
        RB = 104
        e(f"s_mov_b32 s{sSPIN}, 0")
        if c.pts and 'ack' in c.pts: e("s_waitcnt vmcnt(0)"); self.pt('ack')
        if c.fin == 'light':
            e(f"""
        L_fin_lp:
        buffer_load_dword v9, v8, {S(R3)}, s{sT2} offen sc1
        s_add_u32 s{sSPIN}, s{sSPIN}, 1
        s_cmp_lt_u32 s{sSPIN}, 0x10000
        s_waitcnt vmcnt(0)
        s_cbranch_scc0 L_fin_full
        v_cmp_ne_u32 vcc, s{sTAG}, v9
        s_cbranch_vccnz L_fin_lp
        L_fin_full:
        """)
            self.pt('lp')
            for a in range(1, 4):
                for k in range(3): e(f"buffer_load_dwordx4 {vr(RB + 12*(a - 1) + 4*k)}, v10, {S(R3)}, s{sH + 4 + a} offen offset:{1024*k} sc1")
            for n in range(9):
                e(f"s_waitcnt vmcnt({8 - n})")
                e(f"v_xor_b32 v9, s{sTAG}, v{RB + 3}" if n == 0 else f"v_bitop3_b32 v9, v{RB + 4*n + 3}, s{sTAG}, v9 bitop3:0xbe")
            e(f"""
        v_cmp_ne_u32 vcc, 0, v9
        s_cmp_lt_u32 s{sSPIN}, 0x10000
        s_cbranch_scc0 L_fin_ok
        s_cbranch_vccnz L_fin_lp
        L_fin_ok:
        """)

        else:
            e(f"s_mov_b32 s{sT0}, 0\ns_waitcnt vmcnt(0)\nL_fin_lp:")
            for a in range(1, 4):
                e(f"s_bitcmp1_b32 s{sT0}, {a}\ns_cbranch_scc1 L_fin_s{a}")
                for k in range(3): e(f"buffer_load_dwordx4 {vr(RB + 12*(a - 1) + 4*k)}, v10, {S(R3)}, s{sH + 4 + a} offen offset:{1024*k} sc1")
                e(f"L_fin_s{a}:")
            e(f"s_add_u32 s{sSPIN}, s{sSPIN}, 1\ns_waitcnt vmcnt(0)")
            for a in range(1, 4):
                b = RB + 12*(a - 1)
                e(f"""
                v_xor_b32 v9, s{sTAG}, v{b + 3}
                v_bitop3_b32 v9, v{b + 7}, s{sTAG}, v9 bitop3:0xbe
                v_bitop3_b32 v9, v{b + 11}, s{sTAG}, v9 bitop3:0xbe
                v_cmp_ne_u32 vcc, 0, v9
                s_cbranch_vccnz L_fin_n{a}
                s_bitset1_b32 s{sT0}, {a}
                L_fin_n{a}:
                """)
            e(f"""
            s_cmp_lt_u32 s{sSPIN}, 0x10000
            s_cbranch_scc0 L_fin_ok
            s_cmp_eq_u32 s{sT0}, 14
            s_cbranch_scc0 L_fin_lp
            L_fin_ok:
            """)
        self.pt('c2')
        e(f"""
        s_cmp_eq_u32 s{sOWN}, 0
        s_cbranch_scc0 L_noep
        s_add_u32 s{sT1}, s{sE}, 4
        v_mov_b32 v15, s{sT1}
        buffer_store_dword v15, v13, {S(R2)}, 0 offen sc1
        L_noep:
        s_mov_b32 s{sT0}, 0xffff0000
        v_lshlrev_b32 v100, 16, v{NA}
        v_and_b32 v101, s{sT0}, v{NA}
        """)
        T = 144
        for a in range(3):
            for hf in range(2):
                for i in range(4*hf, 4*hf + 4):
                    d = RB + 12*a + i + i // 3
                    e(f"v_lshlrev_b32 v{T + 2*(i&3)}, 16, v{d}\nv_and_b32 v{T + 1 + 2*(i&3)}, s{sT0}, v{d}")
                for i in range(4*hf, 4*hf + 4):
                    e(f"v_add_f32 v{PT[0] + 2*i}, v{PT[0] + 2*i}, v{T + 2*(i&3)}\nv_add_f32 v{PT[0] + 2*i + 1}, v{PT[0] + 2*i + 1}, v{T + 1 + 2*(i&3)}")
            d = RB + 12*a + 10
            e(f"v_lshlrev_b32 v{T}, 16, v{d}\nv_and_b32 v{T + 1}, s{sT0}, v{d}\nv_add_f32 v100, v100, v{T}\nv_add_f32 v101, v101, v{T + 1}")
        for i in range(8): e(f"v_cvt_pk_bf16_f32 v{T + i}, v{PT[0] + 2*i}, v{PT[0] + 2*i + 1}")
        e("v_cvt_pk_bf16_f32 v100, v100, v101")
        for u in range(2):
            for rt in range(2):
                e(f"buffer_store_dwordx2 {vr(T + 4*u + 2*rt, 2)}, v7, {S(R4)}, {'s%d' % sU if rt else 0} offen offset:{32*u} {c.pol_out}")
        e(f"buffer_store_dword v100, v6, {S(R4)}, 0 offen {c.pol_out}")
        self.pt('end')
        self.dump(False)
        e("s_endpgm")
        for b in self.ool: e(b)

    def build(self):
        self.entry(); self.helper(); self.compute()
        self.e("L_end:\ns_endpgm")
        lines, added = insert_nops(self.e.L)
        hdr = open("cdna_kernels/" + NAME + ".s.ref").read().split("\n")
        top = [l for l in hdr if l.startswith(";") and "@launch" not in l]
        out = "\n".join(top) + f"\n; @launch grid=(256,1,1) block=(512,1,1) lds={LDS_BYTES}\n"
        if self.c.pts: out += "; PTS " + " ".join(self.ptorder) + "\n"
        out += f""".amdgcn_target "amdgcn-amd-amdhsa--gfx950"
.text
.globl {NAME}_kernel
.p2align 8
.type {NAME}_kernel,@function
{NAME}_kernel:
"""
        out += "\n".join((l if l.endswith(":") else "    " + l) for l in lines)
        out += f"""
.section .rodata,"a"
.p2align 6
.amdhsa_kernel {NAME}_kernel
  .amdhsa_next_free_vgpr 256
  .amdhsa_next_free_sgpr 102
  .amdhsa_accum_offset 256
  .amdhsa_group_segment_fixed_size 0
  .amdhsa_kernarg_size 104
  .amdhsa_user_sgpr_count 2
  .amdhsa_user_sgpr_kernarg_segment_ptr 1
  .amdhsa_system_sgpr_workgroup_id_x 1
.end_amdhsa_kernel
"""
        return out, added

def make(path, **kw):
    cfg = Cfg()
    for k, v in kw.items():
        assert hasattr(cfg, k), k
        setattr(cfg, k, v)
    txt, added = G(cfg).build()
    open(path, "w").write(txt)
    return added

if __name__ == "__main__":
    print("nops added", make("cdna_kernels/" + NAME + ".s"))
```

```python
import sys, copy
from asmlib import E, insert_nops

NAME = "concat_heads__mha_block_cached__mha_block_cached__near_ridge"

class Cfg:
    pol_x = ""; pol_wq = ""; pol_k = "nt"; pol_v = ""; pol_wo = ""; pol_wot = ""
    bursts = [4, 8, 12, 16]
    nstag = 2; sstep = 2
    t_split = 3; t0_at = 10; t_lead = 3; t1_at = 21
    wo0_at = 14
    pl_at = [8, 25, 43]
    nstart = 4
    fin = 'light'
    hsleep = 1
    dist = 6
    pc_at = [14, 30, 48]
    free_ds = 16
    early = 2
    v_ord = 1
    sched = None
    x_nounit0 = False; x_noninth = False
    lp_unit = 2; lp_depth = 1; lp_sleep = 0
    noout = 0
    pol_out = ''
    wo2_at = 21
    tail_at = 42
    codepf = True
    freerun = False
    diag = False; pts = None; dbgout = None; clk = False; fine = False; nodma = False
    ws_o = 0; ws_p = 16 << 20; ws_f = 32 << 20; ws_e = 40 << 20; ws_t = 41 << 20; ws_s = 48 << 20

KB = 1024
WS_ = [0, 32*KB, 80*KB, 48*KB, 64*KB, 112*KB]
XS_ = [16*KB, 96*KB, 128*KB]
FULLA, FREEA, FREEB = 144*KB, 145*KB, 146*KB
KR, KR1, VR = 80*KB, 48*KB, 112*KB
WOS = [0, 36*KB, 72*KB]
LDS_BYTES = 163840
HORD = [(0, 0), (0, 1), (1, 0), (1, 1), (2, 0), (2, 1), (3, 0), (3, 1)]
NTO = [8, 4, 5, 6, 7, 0, 1, 2, 3]

sW, sBLK, sKG, sBG, sHP, sWL, sB = 4, 5, 6, 7, 8, 9, 10
pX, pK, pV, pWQ, pWO, pOUT, pDBG, pWS = 44, 46, 48, 50, 52, 36, 38, 40
R0, R1, R2, R3, R4, R5 = 56, 60, 64, 68, 72, 96
sT0, sT1, sT2 = 3, 11, 12
sSTG, sE, sXO, sFV = 13, 14, 15, 15
RT, sFM, sHV = 20, 24, 25
sH = 76
sKB, sVB, sC, sSPIN, sOWN, sSND, sU, sRHO = 84, 85, 86, 87, 88, 89, 93, 94
sTAG, sM0, sM1 = 53, 48, 50

def srd(e, R, ptr, off, records):
    if off is None: e(f"s_mov_b32 s{R}, s{ptr}\ns_mov_b32 s{R+1}, s{ptr+1}")
    else: e(f"s_add_u32 s{R}, s{ptr}, s{off}\ns_addc_u32 s{R+1}, s{ptr+1}, 0")
    e(f"s_mov_b32 s{R+2}, {records}\ns_mov_b32 s{R+3}, 0x00020000")
def S(R): return f"s[{R}:{R+3}]"
def vr(a, n=4): return f"v[{a}:{a+n-1}]" if n > 1 else f"v{a}"
MF = "v_mfma_f32_16x16x32_bf16"

class G:
    def __init__(self, cfg):
        if cfg.sched: cfg.nstag = len(cfg.sched); cfg.sstep = 1; cfg.bursts = []
        self.c = cfg; self.e = E(); self.ool = []; self.uid = 0; self.ptorder = []
    def U(self):
        self.uid += 1; return self.uid
    def clock(self): return f"s_mem{'' if self.c.clk else 'real'}time s[100:101]"
    def pt(self, label):
        if not self.c.pts or label not in self.c.pts: return
        k = len(self.ptorder); self.ptorder.append(label); assert k < 20
        if k: self.e(f"s_mov_b32 s{16 + k - 1}, s100")
        self.e(self.clock())
    def lane_stamp(self, k):
        if self.c.diag and (self.c.fine or k == 63):
            self.e(f"{self.clock()}\ns_waitcnt lgkmcnt(0)\nv_writelane_b32 v30, s100, {k}")
    def dump(self, helper):
        e = self.e; c = self.c
        if not c.diag: return
        e("s_waitcnt vmcnt(0) lgkmcnt(0)")
        if helper:
            if c.dbgout is not None: return
            e(f"s_lshl_b32 s{sT0}, s2, 3\ns_add_u32 s{sT0}, s{sT0}, s{sW}\ns_lshl_b32 s{sT0}, s{sT0}, 8\ns_add_u32 s{sT0}, s{sT0}, {c.ws_s + (1 << 20)}")
            srd(e, R0, pWS, sT0, 256)
            e(f"v_lshlrev_b32 v26, 2, v1\nbuffer_store_dword v30, v26, {S(R0)}, 0 offen\ns_waitcnt vmcnt(0)")
            return
        n = len(self.ptorder)
        e(f"s_mov_b32 s{16 + n - 1}, s100")
        if c.dbgout is not None:
            e(f"s_cmp_eq_u32 s2, {c.dbgout}\ns_cbranch_scc0 L_nodbg\ns_cmp_eq_u32 s{sW}, 0\ns_cbranch_scc0 L_nodbg")
            srd(e, R0, pDBG, None, 256)
            for k in range(n):
                e(f"s_sub_u32 s{sT0}, s{16 + k}, s16\nv_mov_b32 v110, s{sT0}\nbuffer_store_dword v110, off, {S(R0)}, 0 offset:{4*k}")
            e("s_waitcnt vmcnt(0)\nL_nodbg:")
            return
        e(f"s_lshl_b32 s{sT0}, s2, 3\ns_add_u32 s{sT0}, s{sT0}, s{sW}\ns_lshl_b32 s{sT0}, s{sT0}, 7\ns_add_u32 s{sT0}, s{sT0}, {c.ws_s}")
        srd(e, R0, pWS, sT0, 128)
        for k in range(n):
            e(f"v_mov_b32 v110, s{16 + k}\nbuffer_store_dword v110, off, {S(R0)}, 0 offset:{4*k}")
        e("s_waitcnt vmcnt(0)")

    def entry(self):
        self.e(f"""
        s_cmp_ge_u32 s2, 256
        s_cbranch_scc1 L_end
        s_load_dwordx16 s[16:31], s[0:1], 0
        s_load_dwordx8 s[32:39], s[0:1], 64
        s_load_dwordx2 s[40:41], s[0:1], 96
        v_lshrrev_b32 v2, 6, v0
        v_and_b32 v1, 63, v0
        v_readfirstlane_b32 s{sW}, v2
        s_and_b32 s{sT0}, s2, 7
        s_lshr_b32 s{sBLK}, s{sT0}, 2
        s_and_b32 s{sKG}, s2, 3
        s_lshr_b32 s{sBG}, s2, 5
        s_lshr_b32 s{sHP}, s2, 3
        s_and_b32 s{sHP}, s{sHP}, 3
        s_and_b32 s{sWL}, s{sW}, 3
        s_lshl_b32 s{sB}, s{sBG}, 2
        s_add_u32 s{sB}, s{sB}, s{sWL}
        v_lshrrev_b32 v20, 3, v1
        v_mul_u32_u24 v20, 1152, v20
        v_and_b32 v21, 7, v1
        v_lshrrev_b32 v22, 4, v1
        v_xor_b32 v21, v21, v22
        v_lshlrev_b32 v21, 4, v21
        v_add_u32 v160, v20, v21
        v_xor_b32 v21, 64, v21
        v_add_u32 v161, v20, v21
        v_add_u32 v162, 16384, v160
        v_add_u32 v163, 24576, v161
        v_add_u32 v161, 8192, v161
        v_bfe_u32 v23, v1, 2, 2
        v_lshlrev_b32 v21, 6, v22
        v_lshl_add_u32 v20, v23, 13, v21
        v_and_b32 v21, 3, v1
        v_lshl_add_u32 v4, v21, 4, v20
        v_add_u32 v5, 31744, v4
        v_xor_b32 v7, 32, v4
        v_add_u32 v6, 63488, v7
        v_add_u32 v7, 95232, v7
        s_cmp_eq_u32 s{sBLK}, 0
        s_waitcnt lgkmcnt(0)
        s_cselect_b64 s[{pX}:{pX+1}], s[16:17], s[26:27]
        s_cselect_b64 s[{pK}:{pK+1}], s[18:19], s[28:29]
        s_cselect_b64 s[{pV}:{pV+1}], s[20:21], s[30:31]
        s_cselect_b64 s[{pWQ}:{pWQ+1}], s[22:23], s[32:33]
        s_cselect_b64 s[{pWO}:{pWO+1}], s[24:25], s[34:35]
        s_cmp_lt_u32 s{sW}, 4
        s_cbranch_scc1 L_compute
        """)

    def vm(self, txt, tag=None):
        self.e.vmem(txt if not self.c.nodma else "s_nop 0", tag)
    def dma4(self, R, voffs, m0, soff, pol, tag, pre=None):
        e = self.e
        e(f"s_add_u32 m0, s{m0[0]}, {m0[1]}")
        if pre: e(pre)
        for j in range(4):
            self.vm(f"buffer_load_dwordx4 v{voffs[j]}, {S(R)}, s{soff} offen offset:{j*1024} {pol} lds", tag)
    def hs(self, j):
        c = self.c
        if j % 2 == 0:
            pre = f"s_mov_b32 s{sXO}, 0\ns_mov_b32 s{sSTG}, 0" if j == 0 else \
                  f"s_add_u32 s{sRHO}, s{sRHO}, 1\ns_lshl_b32 s{sXO}, s{sRHO}, 7\ns_lshl_b32 s{sSTG}, s{sRHO}, 19\ns_and_b32 s{sRHO}, s{sRHO}, 7"
            self.dma4(R5, [160, 161, 162, 163], (sOWN, XS_[(j >> 1) % 3]), sXO, c.pol_x, None, pre)
            self.dma4(R0, [4, 5, 6, 7], (sOWN, WS_[j % 6]), sSTG, c.pol_wq, None)
        else:
            self.dma4(R0, [4, 5, 6, 7], (sOWN, WS_[j % 6]), sSTG, c.pol_wq, None, f"s_add_u32 s{sSTG}, s{sSTG}, 262144")
    def sflag(self, val):
        self.e(f"s_mov_b32 m0, s{sFM}\ns_mov_b32 s{sT1}, {4*val}")
        self.e.vmem(f"buffer_load_dword off, {S(RT)}, s{sT1} lds", f"sf{val}")
    def publish(self, val):
        self.e.wait(vm="sf18")
        self.e(f"s_waitcnt lgkmcnt(0)\nv_mov_b32 v28, {val}\nds_max_u32 v27, v28")
        self.lane_stamp(val)
    def kv_burst(self, g):
        e = self.e; c = self.c
        for a in range(2):
            if g < 2: e(f"s_mov_b32 s{sU}, {g*8192 + a*4096}")
            else: e(f"s_add_u32 s{sU}, s{sHV + g - 2}, {a*4096}")
            for j in range(4):
                self.vm(f"buffer_load_dwordx4 {vr(32 + 32*g + 16*a + 4*j)}, v{8 + j}, {S(R1 if g < 2 else R2)}, s{sU} offen offset:{j*1024} {c.pol_k if g < 2 else c.pol_v}", f"kv{g}")
    def kv_write(self, g):
        self.e.wait(vm=f"kv{g}")
        for p in range(8):
            self.e(f"ds_write_b128 v{19 if g < 2 else 18}, {vr(32 + 32*g + 4*p)} offset:{[KR - KR1, 0, 0, 0][g] + p*1024}")
    def wo(self, hd):
        c = self.c; slot = WOS[hd % 3]
        self.lane_stamp(50 + hd)
        self.dma4(R3, [13, 14, 15, 16], (sKB, slot), sH + hd, c.pol_wo, f"wo{hd}")
        self.dma4(R3, [13, 14, 15, 16], (sKB, slot + 4096), sT1, c.pol_wo, f"wo{hd}", f"s_add_u32 s{sT1}, s{sH + hd}, 18432")
        self.e(f"s_add_u32 m0, s{sVB}, {slot + 32768}")
        if c.x_noninth:
            if hd < 2:
                for k in range(4): self.vm(f"buffer_load_dwordx4 v13, {S(R3)}, s{sH + hd} offen {c.pol_wo} lds", f"wo{hd}")
        else: self.vm(f"buffer_load_dwordx4 v17, {S(R3)}, s{sH + hd} offen {c.pol_wo} lds", f"wo{hd}")
    def vdma(self, hd):
        self.lane_stamp(40 + hd)
        self.dma4(R2, [8, 9, 10, 11], (sKB, VR), sHV + hd, self.c.pol_v, None)
        self.dma4(R2, [8, 9, 10, 11], (sKB, VR + 4096), sT1, self.c.pol_v, None, f"s_add_u32 s{sT1}, s{sHV + hd}, 4096")
    def touch(self, hds):
        if not hds: return
        u = self.U()
        self.e(f"s_cmp_eq_u32 s{sW}, 7\ns_cbranch_scc0 L_nt{u}")
        for hd in hds:
            self.e(f"buffer_load_dword v24, v25, {S(R4)}, s{sH+hd} offen {self.c.pol_wot}" if not self.c.nodma else "s_nop 0")
        self.e(f"L_nt{u}:")
    def fsrc(self, thr):
        return "ds_read_b32 v29, v26" + (f" offset:{FREEB - FREEA}" if self.c.free_ds <= thr <= 20 else "")
    def need_free(self, thr):
        e = self.e
        if thr <= self.known_free: return
        self.known_free = thr
        if thr >= 21:
            assert not self.polled
            e("s_barrier"); return
        if self.c.freerun and thr < 16:
            self.polled = False; return
        u = self.U()
        if not self.polled: e(self.fsrc(thr))
        self.polled = False
        e(f"s_waitcnt lgkmcnt(0)\nv_cmp_gt_u32 vcc, {thr}, v29\ns_cbranch_vccnz L_fs{u}\nL_fo{u}:")
        self.hool.append(f"""
        L_fs{u}:
        s_mov_b32 s{sSPIN}, 0
        L_fl{u}:
        s_sleep {self.c.hsleep}
        {self.fsrc(thr)}
        s_add_u32 s{sSPIN}, s{sSPIN}, 1
        s_cmp_lt_u32 s{sSPIN}, 0x100000
        s_waitcnt lgkmcnt(0)
        s_cbranch_scc0 L_fo{u}
        v_cmp_gt_u32 vcc, {thr}, v29
        s_cbranch_vccnz L_fl{u}
        s_branch L_fo{u}
        """)
    def helper_body(self, off):
        e = self.e; c = self.c
        self.known_free = 0; self.polled = False; self.hool = []
        it = []
        for j in range(1, 18): it.append((max(0, j - 5 + (1 - (j & 1))), 0, 'hs', j))
        sc = c.sched[off] if c.sched else None
        if sc: off = 0
        for g in range(4): it.append((sc[g] if sc else c.bursts[g] + (off if c.bursts[g] < 15 else 0), 1 if g < 2 else c.v_ord, 'kv', g))
        if c.t0_at is not None:
            it.append((sc[4] if sc else c.t0_at + (off if c.t0_at < 14 else 0), 2, 'touch', list(range(c.t_split))))
            if c.t1_at is None:
                for hd in range(c.t_split, 8): it.append((max(20, 20 + hd - c.t_lead), 2, 'touch', [hd]))
            else: it.append((c.t1_at + (off if c.t1_at < 14 else 0), 5, 'touch', list(range(c.t_split, 8))))
        it.append((max(14, c.wo0_at), 3, 'wo', 0))
        it += [(16, 0, 'kw', 0), (17, 0, 'kw', 1), (18, 4, 'vw', 0), (20, 0, 'wo', 1), (c.wo2_at, 1, 'wo', 2), (21, 0, 'vw', 1)]
        for hd in range(2, 8):
            it.append((20 + hd, 0, 'v', hd))
            if hd + 1 < 8: it.append((20 + hd, 1, 'wo', hd + 1))
        it.sort(key=lambda t: (t[0], t[1]))
        late21 = False
        for n, (thr, _, kind, arg) in enumerate(it):
            self.need_free(thr)
            nxt = it[n + 1][0] if n + 1 < len(it) else 0
            if 21 > nxt > self.known_free and kind in ('hs', 'wo'):
                e(self.fsrc(nxt)); self.polled = True
            if kind == 'hs':
                self.hs(arg); self.sflag(arg + 1)
                if c.fine and c.freerun and arg in (3, 5, 9, 13, 17): e('s_waitcnt vmcnt(0)'); self.lane_stamp(32 + arg // 4)
            elif kind == 'kv': self.kv_burst(arg)
            elif kind == 'touch': self.touch(arg)
            elif kind == 'kw':
                self.kv_write(arg); self.publish(19 + arg)
            elif kind == 'vw':
                self.kv_write(2 + arg)
                e.wait(vm=f"wo{arg}"); self.publish(21 + 2*arg)
                if arg == 1 and c.wo2_at < 21: self.sflag(24)
            elif kind == 'wo':
                self.wo(arg)
                if arg == 1: pass
                if arg >= 3 or (arg == 2 and c.wo2_at >= 21): self.sflag(20 + 2*arg)
            elif kind == 'v':
                assert f"wo{arg}" in e.vm.tags
                self.vdma(arg); self.sflag(21 + 2*arg)
        self.lane_stamp(63)
        self.dump(True)
        e("s_endpgm")
        for b in self.hool: e(b)
    def head_offsets(self, bases):
        for hd, (a, r) in enumerate(HORD):
            if r == 0: self.e(f"s_add_u32 s{sT0}, s{sHP}, {a}\ns_and_b32 s{sT0}, s{sT0}, 3\ns_lshl_b32 s{sT0}, s{sT0}, 1")
            else: self.e(f"s_add_u32 s{sT0}, s{sT0}, 1")
            for base, mul in bases: self.e(f"s_mul_i32 s{base + hd}, s{sT0}, {mul}")
    def helper(self):
        e = self.e; c = self.c
        e.vm.__init__('vmcnt', 63)
        e(f"""
        s_lshl_b32 s{sRHO}, s{sHP}, {1 if c.nstart == 8 else 0}
        s_add_u32 s{sRHO}, s{sRHO}, s{sBG}
        s_and_b32 s{sRHO}, s{sRHO}, {c.nstart - 1}
        s_mul_i32 s{sRHO}, s{sRHO}, {8 // c.nstart}
        s_lshr_b32 s{sT2}, s{sWL}, 1
        s_lshl_b32 s{sT0}, s{sKG}, 3
        s_lshl_b32 s{sT1}, s{sHP}, 1
        s_add_u32 s{sT0}, s{sT0}, s{sT1}
        s_add_u32 s{sT0}, s{sT0}, s{sT2}
        s_lshl_b32 s{sT0}, s{sT0}, 8
        s_and_b32 s{sT1}, s{sWL}, 1
        s_lshl_b32 s{sT1}, s{sT1}, 17
        s_add_u32 s{sT0}, s{sT0}, s{sT1}
        s_sub_u32 s{sT2}, 4718592, s{sT0}
        """)
        srd(e, R0, pWQ, sT0, f"s{sT2}")
        e(f"s_mul_i32 s{sT0}, s{sB}, 36864")
        srd(e, R5, pX, sT0, 36864)
        e(f"""
        s_lshl_b32 s{sOWN}, s{sWL}, 12
        """)
        self.hs(0)
        e(f"""
        v_mul_u32_u24 v26, 260, v21
        v_add_u32 v26, {FREEA}, v26
        s_lshl_b32 s{sFM}, s{sWL}, 8
        s_add_u32 s{sFM}, s{sFM}, {FULLA}
        v_lshl_add_u32 v27, v1, 2, s{sFM}
        s_lshl_b32 s{sT0}, s2, 8
        s_add_u32 s{sT0}, s{sT0}, {c.ws_t}
        """)
        srd(e, RT, pWS, sT0, 256)
        e(f"""
        s_lshl_b32 s{sT0}, s{sB}, 5
        s_lshl_b32 s{sT1}, s{sKG}, 3
        s_add_u32 s{sT0}, s{sT0}, s{sT1}
        s_lshl_b32 s{sT2}, s{sT0}, 13
        """)
        srd(e, R2, pV, sT2, 65536)
        e(f"s_lshl_b32 s{sT1}, s{sHP}, 14\ns_add_u32 s{sT2}, s{sT2}, s{sT1}")
        srd(e, R1, pK, sT2, 16384)
        e(f"""
        v_and_b32 v20, 15, v1
        v_xor_b32 v20, v20, v22
        v_lshlrev_b32 v20, 4, v20
        v_lshl_add_u32 v8, v22, 8, v20
        v_xor_b32 v9, 64, v8
        v_xor_b32 v10, 0x80, v8
        v_xor_b32 v11, 0xc0, v8
        s_lshl_b32 s{sKB}, s{sWL}, 13
        s_lshl_b32 s{sVB}, s{sWL}, 10
        s_add_u32 s{sT0}, s{sKB}, {KR1}
        v_lshl_add_u32 v19, v1, 4, s{sT0}
        v_add_u32 v18, {VR - KR1}, v19
        s_mul_i32 s{sT0}, s{sKG}, 1179648
        """)
        srd(e, R4, pWO, sT0, 1179648)
        e(f"""
        s_mul_i32 s{sT1}, s{sWL}, 36864
        s_add_u32 s{sT0}, s{sT0}, s{sT1}
        s_lshl_b32 s{sT1}, s{sHP}, 8
        s_add_u32 s{sT0}, s{sT0}, s{sT1}
        s_sub_u32 s{sT2}, 4718592, s{sT0}
        """)
        srd(e, R3, pWO, sT0, f"s{sT2}")
        e(f"""
        s_and_b32 s{sT0}, s{sKG}, 2
        v_xor_b32 v20, s{sT0}, v22
        v_mul_u32_u24 v23, 1152, v23
        v_lshl_add_u32 v23, v20, 6, v23
        v_lshl_add_u32 v13, v21, 4, v23
        v_add_u32 v14, 3584, v13
        v_xor_b32 v16, 32, v13
        v_add_u32 v15, 7168, v16
        v_add_u32 v16, 10752, v16
        v_bfe_u32 v20, v1, 1, 2
        v_bfe_u32 v21, v1, 3, 1
        v_lshl_add_u32 v20, v21, 3, v20
        v_bfe_u32 v21, v1, 4, 1
        v_lshl_add_u32 v20, v21, 2, v20
        v_bfe_u32 v22, v1, 5, 1
        v_lshl_add_u32 v20, v22, 4, v20
        v_mul_u32_u24 v20, 1152, v20
        v_and_b32 v22, 1, v1
        v_lshl_add_u32 v20, v22, 4, v20
        s_mul_i32 s{sT0}, s{sHP}, 224
        s_sub_u32 s{sT0}, 1024, s{sT0}
        v_add_u32 v17, s{sT0}, v20
        s_lshl_b32 s{sT0}, s{sBG}, 4
        v_and_b32 v20, 15, v1
        v_add_u32 v20, s{sT0}, v20
        v_mul_u32_u24 v20, 1152, v20
        v_lshl_add_u32 v21, v21, 7, s{sT1}
        v_mov_b32 v22, 1024
        v_cmp_gt_u32 vcc, 32, v1
        v_cndmask_b32 v21, v22, v21, vcc
        v_add_u32 v25, v20, v21
        """)
        self.head_offsets([(sH, 147456), (sHV, 8192)])
        e("s_barrier")
        self.sflag(1)
        if c.nstag > 1:
            e(f"s_and_b32 s{sT0}, s{sBG}, {c.nstag - 1}")
            for o in range(1, c.nstag): e(f"s_cmp_eq_u32 s{sT0}, {o}\ns_cbranch_scc1 L_hv{o}")
        saved = copy.deepcopy(e.vm)
        for o in range(c.nstag):
            e.vm = copy.deepcopy(saved)
            if o: e(f"L_hv{o}:")
            self.helper_body(o * c.sstep)

    def compute(self):
        e = self.e; c = self.c
        e.vm.__init__('vmcnt', 63); e.lg.__init__('lgkmcnt', 15)
        ACC, FA, FB, D = 32, 160, 192, c.dist
        e("L_compute:")
        self.pt("entry")
        e(f"s_lshl_b32 s{sT0}, s2, 8\ns_add_u32 s{sT0}, s{sT0}, {c.ws_t}")
        srd(e, R5, pWS, sT0, 256)
        e(f"v_lshlrev_b32 v13, 2, v1")
        e.vmem(f"buffer_store_dword v1, v13, {S(R5)}, 0 offen sc1", 'tab')
        e(f"v_and_b32 v16, 31, v1\nv_lshlrev_b32 v13, 2, v16")
        e(f"""
        s_lshl_b32 s{sT0}, s{sBLK}, 5
        s_add_u32 s{sT2}, s{sT0}, s{sB}
        s_lshl_b32 s{sT0}, s{sT2}, 7
        s_add_u32 s{sT0}, s{sT0}, {c.ws_e}
        """)
        srd(e, R2, pWS, sT0, 128)
        if c.codepf:
            e(f"""
            s_getpc_b64 s[90:91]
            L_pc:
            s_lshr_b32 s{sT0}, s2, 3
            s_lshl_b32 s{sT0}, s{sT0}, 2
            s_add_u32 s{sT0}, s{sT0}, s{sWL}
            s_lshl_b32 s{sT0}, s{sT0}, 9
            v_and_b32 v17, 3, v1
            v_lshl_add_u32 v17, v17, 7, s{sT0}
            v_min_u32 v17, L_end - {NAME}_kernel, v17
            s_sub_u32 s90, s90, L_pc - {NAME}_kernel
            s_subb_u32 s91, s91, 0
            v_mov_b32 v19, s91
            v_add_co_u32 v18, vcc, s90, v17
            v_addc_co_u32 v19, vcc, 0, v19, vcc
            """)
            e.vmem("global_load_dword v28, v[18:19], off", 'code')
        e.vmem(f"buffer_load_dword v14, off, {S(R2)}, 0 sc1", 'epoch')
        e(f"""
        v_and_b32 v21, 3, v1
        v_mul_u32_u24 v22, 260, v21
        v_add_u32 v22, {FULLA}, v22
        s_lshl_b32 s{sT0}, s{sWL}, 8
        s_add_u32 s{sT0}, s{sT0}, {FREEA}
        v_lshl_add_u32 v23, v1, 2, s{sT0}
        s_mov_b32 m0, s{sT0}
        v_mov_b32 v15, 0
        ds_write_b32 v23, v15
        v_add_u32 v19, {FULLA - FREEA}, v23
        ds_write_b32 v19, v15
        v_add_u32 v23, {FREEB - FREEA}, v23
        ds_write_b32 v23, v15

        s_lshl_b32 s{sOWN}, s{sKG}, 2
        s_add_u32 s{sOWN}, s{sOWN}, s{sHP}
        s_lshl_b32 s{sOWN}, s{sOWN}, 7
        s_lshl_b32 s{sT0}, s{sT2}, 17
        s_lshl_b32 s{sT1}, s{sKG}, 15
        s_add_u32 s{sT0}, s{sT0}, s{sT1}
        s_add_u32 s{sT0}, s{sT0}, {c.ws_o}
        """)
        srd(e, R0, pWS, sT0, 32768)
        e(f"""
        s_lshl_b32 s{sT0}, s{sT2}, 2
        s_add_u32 s{sT0}, s{sT0}, s{sHP}
        s_lshl_b32 s{sT0}, s{sT0}, 16
        s_add_u32 s{sT0}, s{sT0}, {c.ws_p}
        """)
        srd(e, R3, pWS, sT0, 65536)
        e(f"""
        s_mul_i32 s{sT0}, s{sB}, 73728
        s_mul_i32 s{sT1}, s{sBLK}, 1152
        s_add_u32 s{sT0}, s{sT0}, s{sT1}
        s_sub_u32 s{sT1}, 2359296, s{sT0}
        """)
        srd(e, R4, pOUT, sT0, f"s{sT1}")
        e(f"""
        v_lshrrev_b32 v17, 4, v1
        v_and_b32 v18, 15, v1
        v_bfe_u32 v19, v1, 2, 2
        v_lshlrev_b32 v19, 6, v19
        v_and_b32 v20, 1, v17
        v_lshl_add_u32 v19, v20, 5, v19
        v_lshl_add_u32 v19, v21, 3, v19
        v_lshl_add_u32 v2, v17, 11, v19
        v_lshrrev_b32 v19, 5, v1
        v_lshlrev_b32 v19, 9, v19
        v_lshl_add_u32 v3, v16, 3, v19
        v_lshrrev_b32 v19, 1, v18
        v_xor_b32 v19, v19, v17
        v_lshlrev_b32 v19, 4, v19
        v_lshl_add_u32 v19, v18, 7, v19
        s_lshl_b32 s{sT0}, s{sWL}, 12
        v_add_u32 v6, s{sT0}, v19
        v_lshrrev_b32 v19, 1, v17
        v_xor_b32 v19, v19, v18
        v_lshlrev_b32 v19, 4, v19
        v_lshl_add_u32 v19, v18, 8, v19
        v_lshl_add_u32 v19, v20, 3, v19
        s_lshl_b32 s{sT0}, s{sWL}, 13
        s_add_u32 s{sKB}, s{sT0}, {KR1}
        s_add_u32 s{sVB}, s{sT0}, {VR}
        v_add_u32 v9, s{sKB}, v19
        v_xor_b32 v19, v17, v18
        v_lshlrev_b32 v19, 4, v19
        v_lshl_add_u32 v19, v18, 8, v19
        v_add_u32 v12, s{sVB}, v19
        v_lshlrev_b32 v10, 4, v1
        v_lshlrev_b32 v11, 2, v1
        v_add_u32 v11, 4096, v11
        s_mov_b32 s{sC}, 0x3e0293ee
        """)
        for a in range(4): e(f"s_add_u32 s{sT0}, s{sHP}, {a}\ns_and_b32 s{sT0}, s{sT0}, 3\ns_lshl_b32 s{sH + a}, s{sT0}, 13")
        e.wait(vm='tab')
        e("s_waitcnt lgkmcnt(0)\ns_barrier")

        def fread(): e.ds("ds_read_b32 v21, v22", "full")
        def fcmp(val): e.wait(lg="full"); e(f"v_cmp_gt_u32 vcc, {val}, v21")
        def fbranch(val):
            if c.freerun and 1 < val <= 18: return
            u = self.U()
            e(f"s_cbranch_vccnz L_cs{u}\nL_co{u}:")
            self.ool.append(f"""
            L_cs{u}:
            s_mov_b32 s{sSPIN}, 0
            L_cl{u}:
            ds_read_b32 v21, v22
            s_add_u32 s{sSPIN}, s{sSPIN}, 1
            s_cmp_lt_u32 s{sSPIN}, 0x100000
            s_waitcnt lgkmcnt(0)
            s_cbranch_scc0 L_co{u}
            v_cmp_gt_u32 vcc, {val}, v21
            s_cbranch_vccnz L_cl{u}
            s_branch L_co{u}
            """)
        def fcheck(val): fcmp(val); fbranch(val)
        def ffree(val): e(f"v_mov_b32 v20, {val}"); e.ds("ds_write_b32 v23, v20")
        FREE_DMA = ("v", f"buffer_load_dword off, {S(R5)}, s{sFV} lds", None)
        def emit_op(op):
            if op[0] == 's': e(op[1])
            elif op[0] == 'v': e.vmem(op[1], op[2])
            elif op[0] == 'd': e.ds(op[1], op[2])
            else: op[1]()
        fixed = {}
        def fx(pos, op):
            assert pos not in fixed, pos
            fixed[pos] = [op] if op else []

        def qread(g, jj):
            j, a = g >> 4, g & 15
            base = WS_[j % 6]; hi = base >= 64*KB
            e.ds(f"ds_read_b64_tr_b16 {vr(FA + 4*(g & 7) + 2*jj, 2)}, v{(16 if hi else 4) + (a & 1)} offset:{base - hi*64*KB + (a >> 3)*8192 + jj*1024 + ((a & 7) >> 1)*256}", f"a{g}")
        def xread_op(j, rt):
            base = XS_[(j >> 1) % 3]; hi = base >= 96*KB
            return ("d", f"ds_read_b128 {vr(FB + 8*(j & 1) + 4*rt)}, v{[[7, 18], [24, 26]][rt][hi] + (j & 1)} offset:{base - hi*96*KB}", f"x{j}")
        e(f"""
        v_mov_b32 v4, v2
        v_xor_b32 v5, 32, v2
        v_add_u32 v16, {64*KB}, v4
        v_add_u32 v17, {64*KB}, v5
        s_and_b32 s{sT0}, s{sKG}, 1
        s_lshl_b32 s{sT0}, s{sT0}, 11
        v_xor_b32 v7, s{sT0}, v6
        v_xor_b32 v8, 64, v7
        v_add_u32 v18, {96*KB}, v7
        v_add_u32 v19, {96*KB}, v8
        v_xor_b32 v24, 0x800, v7
        v_xor_b32 v25, 0x800, v8
        v_xor_b32 v26, 0x800, v18
        v_xor_b32 v27, 0x800, v19
        """)
        fread(); fcheck(1)
        self.pt('hs0')
        emit_op(xread_op(0, 0)); emit_op(xread_op(0, 1))
        for g in range(D): qread(g, 0); qread(g, 1)
        offs = [o * c.sstep for o in range(c.nstag)]
        free_odd = {b + o for b in c.bursts + ([c.t0_at, c.t1_at or 0] if c.t0_at is not None else []) for o in offs} | {c.wo0_at} | ({x for r in c.sched for x in r} if c.sched else set())
        for p in range(1, 19):
            gB = 16*p - D
            if p >= c.free_ds:
                fx(2*(gB - 4), ("s", f"v_mov_b32 v20, {p}")); fx(2*(gB + 1), ("d", "ds_write_b32 v23, v20", None))
            elif p % 2 == 0 or p in free_odd:
                fx(2*(gB - 4), ("s", f"s_mov_b32 s{sFV}, {4*p}")); fx(2*(gB + 1), FREE_DMA)
            if p < 18:
                fx(2*(gB - 8), ("f", fread))
                fx(2*gB - 2, ("f", lambda p=p: fcmp(p + 1)))
                fx(2*gB, ("f", lambda p=p: (fbranch(p + 1), self.pt(f'hs{p}'))))
                fx(2*(gB + 2), xread_op(p, 0)); fx(2*(gB + 3), xread_op(p, 1))
        fx(41, ("f", lambda: (e.wait(vm='epoch'), e(f"v_readfirstlane_b32 s{sE}, v14"))))
        for g in range(288):
            j, a = g >> 4, g & 15
            for rt in range(2):
                if rt == 0 and a == 0: e.wait(lg=f"x{j}")
                if rt == 0 and g % 2 == 0: e.wait(lg=f"a{g + 1}")
                acc = vr(ACC + (2*a + rt)*4)
                e(f"{MF} {acc}, {vr(FA + 4*(g & 7))}, {vr(FB + 8*(j & 1) + 4*rt)}, {acc if j else 0}")
                for op in fixed.get(2*g + rt, []): emit_op(op)
                if g + D < 288: qread(g + D, rt)
        self.pt('qpend')
        QB = [32, 96]
        def qcvt(r, e=e):
            for s in range(4):
                for rt in range(2):
                    for u in range(2):
                        for q in range(2):
                            src = ACC + 64*r + 16*s + 8*u + 4*rt + 2*q
                            e(f"v_cvt_pk_bf16_f32 v{QB[r] + 8*s + 4*rt + 2*u + q}, v{src}, v{src+1}")
        SX, TM, PR, KF = [64, 128], [88, 152], 192, [FA, 208]
        fread()
        for k in range(8): e(f"v_xor_b32 v{24+k}, {32*k}, v9" if k else "v_mov_b32 v24, v9")
        qcvt(0)
        tail = f"""s_add_u32 s{sTAG}, s{sE}, 3
        s_lshl_b32 s{sT2}, s{sKG}, 12
        s_lshl_b32 s{sU}, s{sKG}, 14"""
        for Tp in range(1, 4):
            tail += f"""
        s_xor_b32 s{sT0}, s{sKG}, {Tp}
        s_lshl_b32 s{sT1}, s{sT0}, 14
        s_add_u32 s{sSND + Tp}, s{sT1}, s{sT2}
        s_lshl_b32 s{sT1}, s{sT0}, 12
        s_add_u32 s{sH + 4 + Tp}, s{sT1}, s{sU}"""
        tail += f"""
        s_mov_b32 s{sT2}, s{sU}
        s_bitcmp1_b32 s{sKG}, 1
        s_cselect_b64 s[{sM1}:{sM1+1}], -1, 0
        s_mov_b32 s{sM0}, 0x00ff00ff
        s_mov_b32 s{sM0+1}, 0x00ff00ff
        s_and_b32 s{sT0}, s{sKG}, 1
        s_mul_i32 s{sT0}, s{sT0}, 36864
        s_lshr_b32 s{sT1}, s{sKG}, 1
        s_lshl_b32 s{sU}, s{sT1}, 7
        s_add_u32 s{sU}, s{sU}, s{sT0}
        s_mul_i32 s{sT1}, s{sT1}, 18432
        s_add_u32 s{sT0}, s{sT0}, s{sT1}
        s_lshl_b32 s{sT1}, s{sHP}, 8
        s_add_u32 s{sU}, s{sU}, s{sT1}
        s_lshl_b32 s{sT1}, s{sHP}, 5
        s_add_u32 s{sT0}, s{sT0}, s{sT1}
        s_add_u32 s{sSND}, s{sT0}, 1024
        v_and_b32 v7, 15, v1
        v_mul_u32_u24 v7, 2304, v7
        v_bfe_u32 v8, v1, 4, 1
        v_lshl_add_u32 v7, v8, 5, v7
        v_lshrrev_b32 v8, 5, v1
        v_lshl_add_u32 v7, v8, 4, v7
        v_and_b32 v6, 7, v1
        v_mul_u32_u24 v6, 2304, v6
        v_lshrrev_b32 v8, 4, v1
        v_lshl_add_u32 v6, v8, 3, v6
        v_bfe_u32 v8, v1, 3, 1
        v_lshl_add_u32 v6, v8, 2, v6
        v_and_b32 v8, 3, v1
        v_min_u32 v8, 2, v8
        v_add_u32 v8, 1, v8
        v_xor_b32 v8, s{sKG}, v8
        v_lshlrev_b32 v8, 12, v8
        v_add_u32 v8, {c.lp_unit*1024 + 1020}, v8"""
        e(tail)
        fcheck(19)
        self.pt('Kok')
        def kreads(r):
            for s in range(4):
                for kt in range(2):
                    for hf in range(2):
                        e.ds(f"ds_read_b64 {vr(KF[r] + 8*s + 4*kt + 2*hf, 2)}, v{24 + 2*s + hf} offset:{(KR - KR1)*(1 - r) + kt*4096}", f"k{r}{s}{kt}")
        kreads(0)
        fread()
        C1 = []; qcvt(1, C1.append)
        def smfma(r):
            L = []
            for s in range(4):
                for kt in range(2):
                    for rt in range(2):
                        acc = vr(SX[r] + 8*kt + 4*rt)
                        L.append((f"k{r}{s}{kt}", f"{MF} {acc}, {vr(KF[r] + 8*s + 4*kt)}, {vr(QB[r] + 8*s + 4*rt)}, {acc if s else 0}"))
            return L
        def softmax(r):
            Sx, TMP = SX[r], TM[r]
            t0, t1, t2, t3 = TMP, TMP+1, TMP+2, TMP+3
            def val(rt, i): return Sx + 8*(i >> 2) + 4*rt + (i & 3)
            L = []
            for rt in range(2):
                t = TMP + 2*rt
                L += [f"v_max3_f32 v{t}, v{val(rt,0)}, v{val(rt,1)}, v{val(rt,2)}", f"v_max3_f32 v{t+1}, v{val(rt,3)}, v{val(rt,4)}, v{val(rt,5)}"]
            for rt in range(2): L.append(f"v_max3_f32 v{TMP + 2*rt}, v{TMP + 2*rt}, v{val(rt,6)}, v{val(rt,7)}")
            for rt in range(2): L.append(f"v_max_f32 v{TMP + 2*rt}, v{TMP + 2*rt}, v{TMP + 2*rt + 1}")
            xred = lambda op: [f"v_permlane32_swap_b32 v{t0}, v{t2}", f"{op} v{t0}, v{t0}, v{t2}", f"v_mov_b32 v{t1}, v{t0}",
                               f"v_permlane16_swap_b32 v{t0}, v{t1}", f"{op} v{t0}, v{t0}, v{t1}"]
            L += xred("v_max_f32")
            L += [f"v_mul_f32 v{t0}, s{sC}, v{t0}", f"v_mov_b32 v{t2}, v{t0}", f"v_permlane32_swap_b32 v{t0}, v{t2}"]
            for rt in range(2): L += [f"v_fma_f32 v{val(rt,i)}, v{val(rt,i)}, s{sC}, -v{TMP + 2*rt}" for i in range(8)]
            for rt in range(2): L += [f"v_exp_f32 v{val(rt,i)}, v{val(rt,i)}" for i in range(8)]
            for rt in range(2): L.append(f"v_pk_add_f32 {vr(TMP + 2*rt, 2)}, {vr(val(rt,0), 2)}, {vr(val(rt,2), 2)}")
            for k in (4, 6):
                for rt in range(2): L.append(f"v_pk_add_f32 {vr(TMP + 2*rt, 2)}, {vr(TMP + 2*rt, 2)}, {vr(val(rt,k), 2)}")
            L += [f"v_add_f32 v{t0}, v{t0}, v{t1}", f"v_add_f32 v{t2}, v{t2}, v{t3}"]
            L += xred("v_add_f32")
            L += [f"v_rcp_f32 v{t0}, v{t0}", f"v_mov_b32 v{t2}, v{t0}", f"v_permlane32_swap_b32 v{t0}, v{t2}"]
            for rt in range(2):
                L += [f"v_pk_mul_f32 {vr(val(rt,i), 2)}, {vr(val(rt,i), 2)}, {vr(TMP + 2*rt, 2)} op_sel_hi:[1,0]" for i in range(0, 8, 2)]
            for rt in range(2):
                L += [f"v_cvt_pk_bf16_f32 v{PR + 8*r + 4*rt + q}, v{val(rt,2*q)}, v{val(rt,2*q+1)}" for q in range(4)]
                L.append(f"buffer_store_dwordx4 {vr(PR + 8*r + 4*rt)}, v10, {S(R0)}, s{sH} offen offset:{(2*r + rt)*1024} sc1")
            return L
        def put(x): e.vmem(x, "pst") if x.startswith("buffer") else e(x)
        for n, (tag, m) in enumerate(smfma(0)):
            e.wait(lg=tag); e(m)
            e(C1.pop(0)); e(C1.pop(0))
            if n == 7:
                fcheck(20); self.pt('K1ok'); kreads(1); ffree(20)
        A, B = softmax(0), softmax(1)
        for n, (tag, m) in enumerate(smfma(1)):
            e.wait(lg=tag); e(m)
            if n >= 3: put(A.pop(0)); put(A.pop(0))
        fread()
        while A or B:
            if B: put(B.pop(0))
            if A: put(A.pop(0))
        def xorall(dst, base, init):
            ops = [f"v_bitop3_b32 v{dst}, v{base}, v{base + 1}, {init} bitop3:0x96"]
            ops += [f"v_bitop3_b32 v{dst}, v{base + 2*i}, v{base + 2*i + 1}, v{dst} bitop3:0x96" for i in range(1, 8)]
            return ops
        for x in xorall(15, PR, f"s{sTAG}"): e(x)
        e.vmem(f"buffer_store_dword v15, v11, {S(R0)}, s{sH} offen sc1")
        self.pt('sm')

        PT = [32, 48, 64, 80]; NA = 96; VF = 104; VWA = 136; VWB = 152
        def PA(nt, rt): return (NA + 4*rt) if nt == 8 else PT[2*(nt >> 2) + rt] + 4*(nt & 3)
        STEP = [(hd, nt) for hd in range(6) for nt in NTO]
        STEP += [(6, nt) for nt in NTO[:5]] + [(7, nt) for nt in NTO] + [(6, nt) for nt in NTO[5:]] if c.early else [(hd, nt) for hd in (6, 7) for nt in NTO]
        START = [[h for h, _ in STEP].index(hd) for hd in range(8)]
        VS = [192 if hd == 6 and c.early else VF for hd in range(8)]
        def pread(g, jj):
            (hd, nt), sg = STEP[g >> 2], g & 3
            base = WOS[hd % 3]
            if nt < 8:
                hi = base >= 64*KB
                a, off = (16 if hi else 4) + (nt & 1), base - hi*64*KB + sg*8192 + jj*1024 + (nt >> 1)*256
            else:
                hi = base > 0
                a, off = 18 + hi, base - hi*WOS[1] + sg*1024 + jj*256
            e.ds(f"ds_read_b64_tr_b16 {vr(FA + 4*(g & 7) + 2*jj, 2)}, v{a} offset:{off}", f"a{g}")
        def vread(hd, sg, kt):
            e.ds(f"ds_read_b128 {vr(VS[hd] + 8*sg + 4*kt)}, v{24 + sg} offset:{kt*4096}", f"vf{hd}_{sg}")
        for sg in range(4): e(f"v_xor_b32 v{24 + sg}, {64*sg}, v12" if sg else "v_mov_b32 v24, v12")
        e(f"v_add_u32 v18, 32768, v3\nv_add_u32 v19, {32768 + WOS[1]}, v3")
        fcheck(21)
        self.pt('h0')
        for sg in range(4): vread(0, sg, 0); vread(0, sg, 1)
        for g in range(D): pread(g, 0); pread(g, 1)
        e("s_barrier")
        fixed.clear(); soft = {}
        def at(N, ops): soft.setdefault(N, []).extend(ops)
        VN = {}
        for hd in range(1, 8):
            N = START[hd]
            assert D == 6
            fx((N - 4, 0), ("d", "ds_read_b32 v21, v22", "full"))
            fx((N - 2, 0), ("f", lambda hd=hd: fcmp(20 + 2*hd + (hd == 1))))
            fx((N - 2, 1), ("f", lambda hd=hd: (fbranch(20 + 2*hd + (hd == 1)), self.pt(f'h{hd}'))))
            if hd == 6 and c.early: N -= c.early
            VN[hd] = N - 1
            if hd > 1:
                fx((N - 2, 3), ("d", "ds_read_b32 v21, v22", "full"))
                fx((N - 2, 8), ("f", lambda hd=hd: (self.pt(f'v{hd}q'), fcmp(21 + 2*hd))))
                fx((N - 2, 9), ("f", lambda hd=hd: (fbranch(21 + 2*hd), self.pt(f'v{hd}'))))
            if hd < 7: fx((N, 0 if (N, 0) not in fixed else 3), ("f", lambda hd=hd: (self.pt(f'b{hd}q'), e("s_barrier"), self.pt(f'b{hd}'))))
        def ploads(a):
            return [f"buffer_load_dwordx4 {vr(PR + 16*a + 4*k)}, v10, {S(R0)}, s{sH + a} offen offset:{k*1024} sc1" for k in range(4)] + \
                   [f"buffer_load_dword v14, v11, {S(R0)}, s{sH + a} offen sc1"]
        def pcheck(a):
            ops = xorall(14, PR + 16*a, "v14")
            L = [("f", lambda: (self.pt(f'c{a}q'), e.wait(vm=f"P{a}"), e(ops[0])))] + [("s", x) for x in ops[1:]]
            L.append(("f", lambda: (e(f"v_cmp_ne_u32 vcc, s{sTAG}, v14\ns_cbranch_vccnz L_p_spin{a}\nL_p_ok{a}:"), self.pt(f'c{a}'))))
            nl = "\n"
            self.ool.append(f"""
            L_p_spin{a}:
            s_mov_b32 s{sSPIN}, 0
            L_p_lp{a}:
            {nl.join(ploads(a))}
            s_add_u32 s{sSPIN}, s{sSPIN}, 1
            s_cmp_lt_u32 s{sSPIN}, 0x10000
            s_waitcnt vmcnt(0)
            s_cbranch_scc0 L_p_ok{a}
            {nl.join(ops)}
            v_cmp_ne_u32 vcc, s{sTAG}, v14
            s_cbranch_vccnz L_p_lp{a}
            s_branch L_p_ok{a}
            """)
            return L
        for a in range(1, 4):
            at(c.pl_at[a - 1], [("v", x, f"P{a}") for x in ploads(a)])
            assert c.pl_at[a - 1] < c.pc_at[a - 1] <= 18*a - 1 and (a == 1 or c.pl_at[a - 1] > c.pc_at[a - 2] + 2)
            at(c.pc_at[a - 1], pcheck(a))
        NF = 28
        nin = []
        for rt in range(2):
            a = NA + 4*rt
            nin += [f"v_cvt_pk_bf16_f32 v{a}, v{a}, v{a+1}", f"v_cvt_pk_bf16_f32 v{a+1}, v{a+2}, v{a+3}"]
        for rt in range(2):
            a = NA + 4*rt
            nin += [f"v_mov_b32_dpp v{a+2}, v{a} row_ror:8 row_mask:0xf bank_mask:0xf", f"v_mov_b32_dpp v{a+3}, v{a+1} row_ror:8 row_mask:0xf bank_mask:0xf"]
        for rt in range(2):
            a = NA + 4*rt
            nin += [f"v_cndmask_b32 v{a}, v{a+3}, v{a}, s[{sM0}:{sM0+1}]", f"v_cndmask_b32 v{a+1}, v{a+1}, v{a+2}, s[{sM0}:{sM0+1}]"]
        for rt in range(2):
            a = NA + 4*rt
            nin += [f"v_cndmask_b32 v{NF + rt}, v{a}, v{a+1}, s[{sM1}:{sM1+1}]", f"v_cndmask_b32 v{NF + 2 + rt}, v{a+1}, v{a}, s[{sM1}:{sM1+1}]"]
        E0 = 4 if c.early else 0
        at(66 - E0, [("s", x) for x in nin])
        def send(Tp, k):
            d = PT[Tp]
            ops = [("s", f"v_cvt_pk_bf16_f32 v{d + i + k}, v{d + 2*i}, v{d + 2*i + 1}") for i in range(3*k, min(3*k + 3, 8))]
            if k == 2: ops.append(("s", f"v_mov_b32 v{d + 10}, v{NF + Tp}"))
            ops.append(("s", f"v_mov_b32 v{d + 4*k + 3}, s{sTAG}"))
            if not (c.x_nounit0 and k == 0): ops.append(("v", f"buffer_store_dwordx4 {vr(d + 4*k)}, v10, {S(R3)}, s{sSND + Tp} offen offset:{1024*k} sc1", None))
            return ops
        for k in range(3):
            at(68 - E0 + k, send(2, k) + send(3, k))
            at(72 + k, send(1, k))
        q = []
        def s2(N, rt):
            hd, nt = STEP[N]
            if hd >= 2 and hd % 2 == 0 and N == START[hd]: assert not q, "P check still queued"
            acc = vr(PA(nt, rt))
            e(f"{MF} {acc}, {vr(VWB + 4*(N & 1))}, {vr(PR + 8*hd + 4*rt)}, {acc if hd else 0}")
        def cvt(N, k): e(f"v_cvt_pk_bf16_f32 v{VWB + 4*(N & 1) + k}, v{VWA + 8*(N & 1) + 2*k}, v{VWA + 8*(N & 1) + 2*k + 1}")
        ORD = ['M0', 'M1', 'Sa', 'M2', 'M3', 'M4', 'M5', 'Sb', 'M6', 'M7']
        for N in range(74):
            hd = STEP[min(N, 71)][0]
            q += soft.get(N, [])
            for slot, nm in enumerate(ORD):
                used = 0
                if nm[0] == 'S':
                    rt = int(nm == 'Sb')
                    if N >= 2: s2(N - 2, rt)
                    if 1 <= N <= 72: cvt(N - 1, 2*rt); cvt(N - 1, 2*rt + 1); used += 2
                elif N < 72:
                    m = int(nm[1]); g, kt = 4*N + (m >> 1), m & 1
                    if N == START[hd] and kt == 0: e.wait(lg=f"vf{hd}_{g & 3}")
                    if m in (0, 4): e.wait(lg=f"a{g + 1}")
                    acc = vr(VWA + 8*(N & 1) + 4*kt)
                    e(f"{MF} {acc}, {vr(VS[hd] + 8*(g & 3) + 4*kt)}, {vr(FA + 4*(g & 7))}, {acc if g & 3 else 0}")
                    for op in fixed.get((N, slot), []): emit_op(op); used += 1
                    if g + D < 288: pread(g + D, kt); used += 1
                    for h2 in VN:
                        if VN[h2] == N: vread(h2, g & 3, kt); used += 1
                    if m in (3, 7): used += 1
                else: continue
                while used < 2 and q:
                    emit_op(q.pop(0)); used += 1
        self.pt('p2end')
        for op in q + soft[74]: emit_op(op)
        RB = 104
        e(f"s_mov_b32 s{sSPIN}, 0")
        if c.pts and 'ack' in c.pts: e("s_waitcnt vmcnt(0)"); self.pt('ack')
        if c.fin == 'light':
            e(f"""
        L_fin_lp:
        buffer_load_dword v9, v8, {S(R3)}, s{sT2} offen sc1
        s_add_u32 s{sSPIN}, s{sSPIN}, 1
        s_cmp_lt_u32 s{sSPIN}, 0x10000
        s_waitcnt vmcnt(0)
        s_cbranch_scc0 L_fin_full
        v_cmp_ne_u32 vcc, s{sTAG}, v9
        s_cbranch_vccnz L_fin_lp
        L_fin_full:
        """)
            self.pt('lp')
            for a in range(1, 4):
                for k in range(3): e(f"buffer_load_dwordx4 {vr(RB + 12*(a - 1) + 4*k)}, v10, {S(R3)}, s{sH + 4 + a} offen offset:{1024*k} sc1" if not (c.x_nounit0 and k == 0) else f"v_mov_b32 v{RB + 12*(a - 1) + 3}, s{sTAG}")
            if c.x_nounit0: e("s_waitcnt vmcnt(0)")
            for n in range(9):
                e(f"s_waitcnt vmcnt({8 - n})")
                e(f"v_xor_b32 v9, s{sTAG}, v{RB + 3}" if n == 0 else f"v_bitop3_b32 v9, v{RB + 4*n + 3}, s{sTAG}, v9 bitop3:0xbe")
            e(f"""
        v_cmp_ne_u32 vcc, 0, v9
        s_cmp_lt_u32 s{sSPIN}, 0x10000
        s_cbranch_scc0 L_fin_ok
        s_cbranch_vccnz L_fin_lp
        L_fin_ok:
        """)

        else:
            if c.fin == 'hyb':
                e("L_fin_l0:")
                for k in range(c.lp_depth): e(f"buffer_load_dword v{144 + k}, v8, {S(R3)}, s{sT2} offen sc1\ns_sleep {c.lp_sleep}")
                e("L_fin_l1:")
                for k in range(c.lp_depth):
                    e(f"""
                    s_waitcnt vmcnt({c.lp_depth - 1})
                    v_cmp_ne_u32 vcc, s{sTAG}, v{144 + k}
                    s_cbranch_vccz L_fin_l2
                    buffer_load_dword v{144 + k}, v8, {S(R3)}, s{sT2} offen sc1
                    """)
                e(f"""
                s_add_u32 s{sSPIN}, s{sSPIN}, 1
                s_cmp_lt_u32 s{sSPIN}, 0x8000
                s_cbranch_scc1 L_fin_l1
                L_fin_l2:
                """)
                self.pt('lp')
                e(f"s_mov_b32 s{sT0}, 0\nL_fin_lp:")
            else: e(f"s_mov_b32 s{sT0}, 0\ns_waitcnt vmcnt(0)\nL_fin_lp:")
            for a in range(1, 4):
                e(f"s_bitcmp1_b32 s{sT0}, {a}\ns_cbranch_scc1 L_fin_s{a}")
                for k in range(3): e(f"buffer_load_dwordx4 {vr(RB + 12*(a - 1) + 4*k)}, v10, {S(R3)}, s{sH + 4 + a} offen offset:{1024*k} sc1")
                e(f"L_fin_s{a}:")
            e(f"s_add_u32 s{sSPIN}, s{sSPIN}, 1\ns_waitcnt vmcnt(0)")
            for a in range(1, 4):
                b = RB + 12*(a - 1)
                e(f"""
                v_xor_b32 v9, s{sTAG}, v{b + 3}
                v_bitop3_b32 v9, v{b + 7}, s{sTAG}, v9 bitop3:0xbe
                v_bitop3_b32 v9, v{b + 11}, s{sTAG}, v9 bitop3:0xbe
                v_cmp_ne_u32 vcc, 0, v9
                s_cbranch_vccnz L_fin_n{a}
                s_bitset1_b32 s{sT0}, {a}
                L_fin_n{a}:
                """)
            e(f"""
            s_cmp_lt_u32 s{sSPIN}, 0x10000
            s_cbranch_scc0 L_fin_ok
            s_cmp_eq_u32 s{sT0}, 14
            s_cbranch_scc0 L_fin_lp
            L_fin_ok:
            """)
        self.pt('cf')
        e(f"""
        s_cmp_eq_u32 s{sOWN}, 0
        s_cbranch_scc0 L_noep
        s_add_u32 s{sT1}, s{sE}, 4
        v_mov_b32 v15, s{sT1}
        buffer_store_dword v15, v13, {S(R2)}, 0 offen sc1
        L_noep:
        s_mov_b32 s{sT0}, 0xffff0000
        v_lshlrev_b32 v100, 16, v{NF}
        v_and_b32 v101, s{sT0}, v{NF}
        """)
        T = 144
        for a in range(3):
            for hf in range(2):
                for i in range(4*hf, 4*hf + 4):
                    d = RB + 12*a + i + i // 3
                    e(f"v_lshlrev_b32 v{T + 2*(i&3)}, 16, v{d}\nv_and_b32 v{T + 1 + 2*(i&3)}, s{sT0}, v{d}")
                for i in range(4*hf, 4*hf + 4):
                    e(f"v_add_f32 v{PT[0] + 2*i}, v{PT[0] + 2*i}, v{T + 2*(i&3)}\nv_add_f32 v{PT[0] + 2*i + 1}, v{PT[0] + 2*i + 1}, v{T + 1 + 2*(i&3)}")
            d = RB + 12*a + 10
            e(f"v_lshlrev_b32 v{T}, 16, v{d}\nv_and_b32 v{T + 1}, s{sT0}, v{d}\nv_add_f32 v100, v100, v{T}\nv_add_f32 v101, v101, v{T + 1}")
        for i in range(8): e(f"v_cvt_pk_bf16_f32 v{T + i}, v{PT[0] + 2*i}, v{PT[0] + 2*i + 1}")
        e("v_cvt_pk_bf16_f32 v100, v100, v101")
        for u in range(2):
            for q in range(2): e(f"v_permlane16_swap_b32 v{T + 4*u + q}, v{T + 4*u + 2 + q}")
        if c.noout < 1: e(f"buffer_store_dword v100, v6, {S(R4)}, s{sSND} offen {c.pol_out}")
        for u in range(2):
            if c.noout < 2: e(f"buffer_store_dwordx4 {vr(T + 4*u)}, v7, {S(R4)}, s{sU} offen offset:{64*u} {c.pol_out}")
        self.pt('end')
        self.dump(False)
        e("s_endpgm")
        for b in self.ool: e(b)

    def build(self):
        self.entry(); self.helper(); self.compute()
        self.e("L_end:\ns_endpgm")
        lines, added = insert_nops(self.e.L)
        hdr = open("cdna_kernels/" + NAME + ".s.ref").read().split("\n")
        top = [l for l in hdr if l.startswith(";") and "@launch" not in l]
        out = "\n".join(top) + f"\n; @launch grid=(256,1,1) block=(512,1,1) lds={LDS_BYTES}\n"
        if self.c.pts: out += "; PTS " + " ".join(self.ptorder) + "\n"
        out += f""".amdgcn_target "amdgcn-amd-amdhsa--gfx950"
.text
.globl {NAME}_kernel
.p2align 8
.type {NAME}_kernel,@function
{NAME}_kernel:
"""
        out += "\n".join((l if l.endswith(":") else "    " + l) for l in lines)
        out += f"""
.section .rodata,"a"
.p2align 6
.amdhsa_kernel {NAME}_kernel
  .amdhsa_next_free_vgpr 256
  .amdhsa_next_free_sgpr 102
  .amdhsa_accum_offset 256
  .amdhsa_group_segment_fixed_size 0
  .amdhsa_kernarg_size 104
  .amdhsa_user_sgpr_count 2
  .amdhsa_user_sgpr_kernarg_segment_ptr 1
  .amdhsa_system_sgpr_workgroup_id_x 1
.end_amdhsa_kernel
"""
        return out, added

def make(path, **kw):
    cfg = Cfg()
    for k, v in kw.items():
        assert hasattr(cfg, k), k
        setattr(cfg, k, v)
    txt, added = G(cfg).build()
    open(path, "w").write(txt)
    return added

if __name__ == "__main__":
    print("nops added", make("cdna_kernels/" + NAME + ".s"))
```

```python
import sys, copy
from asmlib import E, insert_nops

NAME = "concat_heads__mha_block_cached__mha_block_cached__near_ridge"

class Cfg:
    pol_x = ""; pol_wq = ""; pol_k = "nt"; pol_v = ""; pol_wo = ""; pol_wot = ""
    bursts = [4, 8, 12, 16]
    nstag = 2; sstep = 2
    t_split = 3; t0_at = 10; t_lead = 3; t1_at = 21
    wo0_at = 14
    pl_at = [8, 25, 43]
    nstart = 4
    fin = 'light'
    hsleep = 1
    dist = 6
    pc_at = [14, 30, 48]
    free_ds = 16
    t_main = True
    npre = 4
    safebar = 3
    free_pos = 4
    early = 2
    v_ord = 1
    sched = None
    x_nounit0 = False; x_noninth = False
    lp_unit = 2; lp_depth = 1; lp_sleep = 0
    noout = 0
    pol_out = ''
    wo2_at = 21
    tail_at = 42
    codepf = True
    freerun = False
    diag = False; pts = None; dbgout = None; clk = False; fine = False; nodma = False
    ws_o = 0; ws_p = 16 << 20; ws_f = 32 << 20; ws_e = 40 << 20; ws_t = 41 << 20; ws_s = 48 << 20

KB = 1024
WS_ = [0, 32*KB, 80*KB, 48*KB, 64*KB, 112*KB]
XS_ = [16*KB, 96*KB, 128*KB]
FULLA, FREEA, FREEB = 144*KB, 145*KB, 146*KB
KR, KR1, VR = 80*KB, 48*KB, 112*KB
WOS = [0, 36*KB, 72*KB]
LDS_BYTES = 163840
HORD = [(0, 0), (0, 1), (1, 0), (1, 1), (2, 0), (2, 1), (3, 0), (3, 1)]
NTO = [8, 4, 5, 6, 7, 0, 1, 2, 3]

sW, sBLK, sKG, sBG, sHP, sWL, sB = 4, 5, 6, 7, 8, 9, 10
pX, pK, pV, pWQ, pWO, pOUT, pDBG, pWS = 44, 46, 48, 50, 52, 36, 38, 40
R0, R1, R2, R3, R4, R5 = 56, 60, 64, 68, 72, 96
sT0, sT1, sT2 = 3, 11, 12
sSTG, sE, sXO, sFV = 13, 14, 15, 15
RT, sFM, sHV = 20, 24, 25
sH = 76
sKB, sVB, sC, sSPIN, sOWN, sSND, sU, sRHO = 84, 85, 86, 87, 88, 89, 93, 94
sTAG, sM0, sM1 = 53, 48, 50

def srd(e, R, ptr, off, records):
    if off is None: e(f"s_mov_b32 s{R}, s{ptr}\ns_mov_b32 s{R+1}, s{ptr+1}")
    else: e(f"s_add_u32 s{R}, s{ptr}, s{off}\ns_addc_u32 s{R+1}, s{ptr+1}, 0")
    e(f"s_mov_b32 s{R+2}, {records}\ns_mov_b32 s{R+3}, 0x00020000")
def S(R): return f"s[{R}:{R+3}]"
def vr(a, n=4): return f"v[{a}:{a+n-1}]" if n > 1 else f"v{a}"
MF = "v_mfma_f32_16x16x32_bf16"

class G:
    def __init__(self, cfg):
        if cfg.sched: cfg.nstag = len(cfg.sched); cfg.sstep = 1; cfg.bursts = []
        self.c = cfg; self.e = E(); self.ool = []; self.uid = 0; self.ptorder = []
    def U(self):
        self.uid += 1; return self.uid
    def clock(self): return f"s_mem{'' if self.c.clk else 'real'}time s[100:101]"
    def pt(self, label):
        if not self.c.pts or label not in self.c.pts: return
        k = len(self.ptorder); self.ptorder.append(label); assert k < 20
        if k: self.e(f"s_mov_b32 s{16 + k - 1}, s100")
        self.e(self.clock())
    def lane_stamp(self, k):
        if self.c.diag and (self.c.fine or k == 63):
            self.e(f"{self.clock()}\ns_waitcnt lgkmcnt(0)\nv_writelane_b32 v30, s100, {k}")
    def dump(self, helper):
        e = self.e; c = self.c
        if not c.diag: return
        e("s_waitcnt vmcnt(0) lgkmcnt(0)")
        if helper:
            if c.dbgout is not None: return
            e(f"s_lshl_b32 s{sT0}, s2, 3\ns_add_u32 s{sT0}, s{sT0}, s{sW}\ns_lshl_b32 s{sT0}, s{sT0}, 8\ns_add_u32 s{sT0}, s{sT0}, {c.ws_s + (1 << 20)}")
            srd(e, R0, pWS, sT0, 256)
            e(f"v_lshlrev_b32 v26, 2, v1\nbuffer_store_dword v30, v26, {S(R0)}, 0 offen\ns_waitcnt vmcnt(0)")
            return
        n = len(self.ptorder)
        e(f"s_mov_b32 s{16 + n - 1}, s100")
        if c.dbgout is not None:
            e(f"s_cmp_eq_u32 s2, {c.dbgout}\ns_cbranch_scc0 L_nodbg\ns_cmp_eq_u32 s{sW}, 0\ns_cbranch_scc0 L_nodbg")
            srd(e, R0, pDBG, None, 256)
            for k in range(n):
                e(f"s_sub_u32 s{sT0}, s{16 + k}, s16\nv_mov_b32 v110, s{sT0}\nbuffer_store_dword v110, off, {S(R0)}, 0 offset:{4*k}")
            e("s_waitcnt vmcnt(0)\nL_nodbg:")
            return
        e(f"s_lshl_b32 s{sT0}, s2, 3\ns_add_u32 s{sT0}, s{sT0}, s{sW}\ns_lshl_b32 s{sT0}, s{sT0}, 7\ns_add_u32 s{sT0}, s{sT0}, {c.ws_s}")
        srd(e, R0, pWS, sT0, 128)
        for k in range(n):
            e(f"v_mov_b32 v110, s{16 + k}\nbuffer_store_dword v110, off, {S(R0)}, 0 offset:{4*k}")
        e("s_waitcnt vmcnt(0)")

    def entry(self):
        self.pt("entry")
        self.e(f"""
        s_cmp_ge_u32 s2, 256
        s_cbranch_scc1 L_end
        s_load_dwordx16 s[16:31], s[0:1], 0
        s_load_dwordx8 s[32:39], s[0:1], 64
        s_load_dwordx2 s[40:41], s[0:1], 96
        v_lshrrev_b32 v2, 6, v0
        v_and_b32 v1, 63, v0
        v_readfirstlane_b32 s{sW}, v2
        s_and_b32 s{sT0}, s2, 7
        s_lshr_b32 s{sBLK}, s{sT0}, 2
        s_and_b32 s{sKG}, s2, 3
        s_lshr_b32 s{sBG}, s2, 5
        s_bfe_u32 s{sHP}, s2, 0x20003
        s_and_b32 s{sWL}, s{sW}, 3
        s_lshl_b32 s{sB}, s{sBG}, 2
        s_add_u32 s{sB}, s{sB}, s{sWL}
        s_cmp_lt_u32 s{sW}, 4
        s_cbranch_scc1 L_compute
        """)

    def vm(self, txt, tag=None):
        self.e.vmem(txt if not self.c.nodma else "s_nop 0", tag)
    def dma4(self, R, voffs, m0, soff, pol, tag, pre=None):
        e = self.e
        e(f"s_add_u32 m0, s{m0[0]}, {m0[1]}")
        if pre: e(pre)
        for j in range(4):
            self.vm(f"buffer_load_dwordx4 v{voffs[j]}, {S(R)}, s{soff} offen offset:{j*1024} {pol} lds", tag)
    def hs(self, j):
        c = self.c
        if j % 2 == 0:
            pre = f"s_mov_b32 s{sXO}, 0\ns_mov_b32 s{sSTG}, 0" if j == 0 else \
                  f"s_add_u32 s{sRHO}, s{sRHO}, 1\ns_lshl_b32 s{sXO}, s{sRHO}, 7\ns_lshl_b32 s{sSTG}, s{sRHO}, 19\ns_and_b32 s{sRHO}, s{sRHO}, 7"
            if c.nstart == 3:
                pre = f"s_lshl_b32 s{sXO}, s{sRHO}, 7\ns_lshl_b32 s{sSTG}, s{sRHO}, 19"
                if j: pre = f"s_add_u32 s{sRHO}, s{sRHO}, 1\ns_cmp_eq_u32 s{sRHO}, 9\ns_cselect_b32 s{sRHO}, 0, s{sRHO}\n" + pre
            self.dma4(R5, [160, 161, 162, 163], (sOWN, XS_[(j >> 1) % 3]), sXO, c.pol_x, None, pre)
            self.dma4(R0, [4, 5, 6, 7], (sOWN, WS_[j % 6]), sSTG, c.pol_wq, None)
        else:
            self.dma4(R0, [4, 5, 6, 7], (sOWN, WS_[j % 6]), sSTG, c.pol_wq, None, f"s_add_u32 s{sSTG}, s{sSTG}, 262144")
    def sflag(self, val):
        self.e(f"s_mov_b32 m0, s{sFM}\ns_mov_b32 s{sT1}, {4*val}")
        self.e.vmem(f"buffer_load_dword off, {S(RT)}, s{sT1} lds", f"sf{val}")
    def publish(self, val):
        self.e.wait(vm="sf18")
        self.e(f"s_waitcnt lgkmcnt(0)\nv_mov_b32 v28, {val}\nds_max_u32 v27, v28")
        self.lane_stamp(val)
    def kv_burst(self, g):
        e = self.e; c = self.c
        for a in range(2):
            if g < 2: e(f"s_mov_b32 s{sU}, {g*8192 + a*4096}")
            else: e(f"s_add_u32 s{sU}, s{sHV + g - 2}, {a*4096}")
            for j in range(4):
                self.vm(f"buffer_load_dwordx4 {vr(32 + 32*g + 16*a + 4*j)}, v{8 + j}, {S(R1 if g < 2 else R2)}, s{sU} offen offset:{j*1024} {c.pol_k if g < 2 else c.pol_v}", f"kv{g}")
    def kv_write(self, g):
        self.e.wait(vm=f"kv{g}")
        for p in range(8):
            self.e(f"ds_write_b128 v{19 if g < 2 else 18}, {vr(32 + 32*g + 4*p)} offset:{[KR - KR1, 0, 0, 0][g] + p*1024}")
    def wo(self, hd):
        c = self.c; slot = WOS[hd % 3]
        self.lane_stamp(50 + hd)
        self.dma4(R3, [13, 14, 15, 16], (sKB, slot), sH + hd, c.pol_wo, f"wo{hd}")
        self.dma4(R3, [13, 14, 15, 16], (sKB, slot + 4096), sT1, c.pol_wo, f"wo{hd}", f"s_add_u32 s{sT1}, s{sH + hd}, 18432")
        self.e(f"s_add_u32 m0, s{sVB}, {slot + 32768}")
        if c.x_noninth:
            if hd < 2:
                for k in range(4): self.vm(f"buffer_load_dwordx4 v13, {S(R3)}, s{sH + hd} offen {c.pol_wo} lds", f"wo{hd}")
        else: self.vm(f"buffer_load_dwordx4 v17, {S(R3)}, s{sH + hd} offen {c.pol_wo} lds", f"wo{hd}")
    def vdma(self, hd):
        self.lane_stamp(40 + hd)
        self.dma4(R2, [8, 9, 10, 11], (sKB, VR), sHV + hd, self.c.pol_v, None)
        self.dma4(R2, [8, 9, 10, 11], (sKB, VR + 4096), sT1, self.c.pol_v, None, f"s_add_u32 s{sT1}, s{sHV + hd}, 4096")
    def touch(self, hds):
        if not hds: return
        u = self.U()
        self.e(f"s_cmp_eq_u32 s{sW}, 7\ns_cbranch_scc0 L_nt{u}")
        for hd in hds:
            self.e(f"buffer_load_dword v24, v{25 if hd < 2 or not self.c.t_main else 31}, {S(R4)}, s{sH+hd} offen {self.c.pol_wot}" if not self.c.nodma else "s_nop 0")
        self.e(f"L_nt{u}:")
    def fsrc(self, thr):
        return "ds_read_b32 v29, v26" + (f" offset:{FREEB - FREEA}" if self.c.free_ds <= thr <= 20 else "")
    def need_free(self, thr):
        e = self.e
        if thr <= self.known_free: return
        self.known_free = thr
        if thr >= 21:
            assert not self.polled
            e("s_barrier"); return
        if self.c.freerun and thr < 16:
            self.polled = False; return
        u = self.U()
        if not self.polled: e(self.fsrc(thr))
        self.polled = False
        e(f"s_waitcnt lgkmcnt(0)\nv_cmp_gt_u32 vcc, {thr}, v29\ns_cbranch_vccnz L_fs{u}\nL_fo{u}:")
        self.hool.append(f"""
        L_fs{u}:
        s_mov_b32 s{sSPIN}, 0
        L_fl{u}:
        s_sleep {self.c.hsleep}
        {self.fsrc(thr)}
        s_add_u32 s{sSPIN}, s{sSPIN}, 1
        s_cmp_lt_u32 s{sSPIN}, 0x100000
        s_waitcnt lgkmcnt(0)
        s_cbranch_scc0 L_fo{u}
        v_cmp_gt_u32 vcc, {thr}, v29
        s_cbranch_vccnz L_fl{u}
        s_branch L_fo{u}
        """)
    def helper_body(self, off):
        e = self.e; c = self.c
        self.known_free = 0; self.polled = False; self.hool = []
        it = []
        for j in range(c.npre, 18): it.append((max(0, j - 5 + (1 - (j & 1))), 0, 'hs', j))
        sc = c.sched[off] if c.sched else None
        if sc: off = 0
        for g in range(4): it.append((sc[g] if sc else c.bursts[g] + (off if c.bursts[g] < 15 else 0), 1 if g < 2 else c.v_ord, 'kv', g))
        if c.t0_at is not None:
            it.append((sc[4] if sc else c.t0_at + (off if c.t0_at < 14 else 0), 2, 'touch', list(range(c.t_split))))
            if c.t1_at is None:
                for hd in range(c.t_split, 8): it.append((max(20, 20 + hd - c.t_lead), 2, 'touch', [hd]))
            else: it.append((c.t1_at + (off if c.t1_at < 14 else 0), 5, 'touch', list(range(c.t_split, 8))))
        it.append((max(14, c.wo0_at), 3, 'wo', 0))
        it += [(16, 0, 'kw', 0), (17, 0, 'kw', 1), (18, 4, 'vw', 0), (20, 0, 'wo', 1), (c.wo2_at, 1, 'wo', 2), (21, 0, 'vw', 1)]
        for hd in range(2, 8):
            it.append((20 + hd, 0, 'v', hd))
            if hd + 1 < 8: it.append((20 + hd, 1, 'wo', hd + 1))
        it.sort(key=lambda t: (t[0], t[1]))
        late21 = False
        for n, (thr, _, kind, arg) in enumerate(it):
            self.need_free(thr)
            nxt = it[n + 1][0] if n + 1 < len(it) else 0
            if 21 > nxt > self.known_free and kind in ('hs', 'wo'):
                e(self.fsrc(nxt)); self.polled = True
            if kind == 'hs':
                self.hs(arg); self.sflag(arg + 1)
                if c.fine and c.freerun and arg in (3, 5, 9, 13, 17): e('s_waitcnt vmcnt(0)'); self.lane_stamp(32 + arg // 4)
            elif kind == 'kv': self.kv_burst(arg)
            elif kind == 'touch': self.touch(arg)
            elif kind == 'kw':
                self.kv_write(arg); self.publish(19 + arg)
            elif kind == 'vw':
                self.kv_write(2 + arg)
                e.wait(vm=f"wo{arg}"); self.publish(21 + 2*arg)
                if arg == 1 and c.wo2_at < 21: self.sflag(24)
            elif kind == 'wo':
                self.wo(arg)
                if arg == 1: pass
                if arg >= 3 or (arg == 2 and c.wo2_at >= 21): self.sflag(20 + 2*arg)
            elif kind == 'v':
                assert f"wo{arg}" in e.vm.tags
                self.vdma(arg); self.sflag(21 + 2*arg)
        self.lane_stamp(63)
        self.dump(True)
        e("s_endpgm")
        for b in self.hool: e(b)
    def head_offsets(self, bases):
        for hd, (a, r) in enumerate(HORD):
            if r == 0: self.e(f"s_add_u32 s{sT0}, s{sHP}, {a}\ns_and_b32 s{sT0}, s{sT0}, 3\ns_lshl_b32 s{sT0}, s{sT0}, 1")
            else: self.e(f"s_add_u32 s{sT0}, s{sT0}, 1")
            for base, mul in bases: self.e(f"s_mul_i32 s{base + hd}, s{sT0}, {mul}")
    def helper(self):
        e = self.e; c = self.c
        e.vm.__init__('vmcnt', 63)
        e(f"""
        v_lshrrev_b32 v20, 3, v1
        v_mul_u32_u24 v20, 1152, v20
        v_and_b32 v21, 7, v1
        v_lshrrev_b32 v22, 4, v1
        v_xor_b32 v21, v21, v22
        v_lshlrev_b32 v21, 4, v21
        v_add_u32 v160, v20, v21
        v_xor_b32 v21, 64, v21
        v_add_u32 v161, v20, v21
        v_add_u32 v162, 16384, v160
        v_add_u32 v163, 24576, v161
        v_add_u32 v161, 8192, v161
        v_bfe_u32 v23, v1, 2, 2
        v_lshlrev_b32 v21, 6, v22
        v_lshl_add_u32 v20, v23, 13, v21
        v_and_b32 v21, 3, v1
        v_lshl_add_u32 v4, v21, 4, v20
        v_add_u32 v5, 31744, v4
        v_xor_b32 v7, 32, v4
        v_add_u32 v6, 63488, v7
        v_add_u32 v7, 95232, v7
        v_lshlrev_b32 v20, 2, v1
        s_lshl_b32 s{sRHO}, s{sHP}, {1 if c.nstart == 8 else 0}
        s_add_u32 s{sRHO}, s{sRHO}, s{sBG}
        {f"s_and_b32 s{sRHO}, s{sRHO}, {c.nstart - 1}" if c.nstart != 3 else f"s_mul_i32 s{sT0}, s{sRHO}, 11"}
        {f"s_mul_i32 s{sRHO}, s{sRHO}, {8 // c.nstart}" if c.nstart != 3 else f"s_lshr_b32 s{sT0}, s{sT0}, 5"}
        {"" if c.nstart != 3 else f"s_mul_i32 s{sT0}, s{sT0}, 3"}
        {"" if c.nstart != 3 else f"s_sub_u32 s{sRHO}, s{sRHO}, s{sT0}"}
        {"" if c.nstart != 3 else f"s_mul_i32 s{sRHO}, s{sRHO}, 3"}
        s_lshr_b32 s{sT2}, s{sWL}, 1
        s_lshl_b32 s{sT0}, s{sKG}, 3
        s_lshl_b32 s{sT1}, s{sHP}, 1
        s_add_u32 s{sT0}, s{sT0}, s{sT1}
        s_add_u32 s{sT0}, s{sT0}, s{sT2}
        s_lshl_b32 s{sT0}, s{sT0}, 8
        s_and_b32 s{sT1}, s{sWL}, 1
        s_lshl_b32 s{sT1}, s{sT1}, 17
        s_add_u32 s{sT0}, s{sT0}, s{sT1}
        s_sub_u32 s{R0+2}, 4718592, s{sT0}
        s_mov_b32 s{R0+3}, 0x00020000
        s_mul_i32 s{sT1}, s{sB}, 36864
        s_mov_b32 s{R5+2}, 36864
        s_mov_b32 s{R5+3}, 0x00020000
        s_lshl_b32 s{sT2}, s2, 8
        s_add_u32 s{sT2}, s{sT2}, {c.ws_t}
        s_lshl_b32 s{sOWN}, s{sWL}, 12
        s_cmp_eq_u32 s{sBLK}, 0
        s_waitcnt lgkmcnt(0)
        s_cselect_b64 s[{pX}:{pX+1}], s[16:17], s[26:27]
        s_cselect_b64 s[{pWQ}:{pWQ+1}], s[22:23], s[32:33]
        s_cselect_b64 s[{pK}:{pK+1}], s[18:19], s[28:29]
        s_cselect_b64 s[{pV}:{pV+1}], s[20:21], s[30:31]
        s_cselect_b64 s[{pWO}:{pWO+1}], s[24:25], s[34:35]
        s_add_u32 s{R5}, s{pX}, s{sT1}
        s_addc_u32 s{R5+1}, s{pX+1}, 0
        s_add_u32 s{R0}, s{pWQ}, s{sT0}
        s_addc_u32 s{R0+1}, s{pWQ+1}, 0
        """)
        srd(e, RT, pWS, sT2, 256)
        e.vmem(f"buffer_store_dword v1, v20, {S(RT)}, 0 offen sc1", 'tab')
        self.hs(0)
        e(f"""
        v_mul_u32_u24 v26, 260, v21
        v_add_u32 v26, {FREEA}, v26
        s_lshl_b32 s{sFM}, s{sWL}, 8
        s_add_u32 s{sFM}, s{sFM}, {FULLA}
        v_lshl_add_u32 v27, v1, 2, s{sFM}
        """)
        e("s_barrier")
        e.wait(vm='tab')
        self.sflag(1)
        for j in range(1, c.npre): self.hs(j); self.sflag(j + 1)
        e(f"""
        s_lshl_b32 s{sT0}, s{sB}, 5
        s_lshl_b32 s{sT1}, s{sKG}, 3
        s_add_u32 s{sT0}, s{sT0}, s{sT1}
        s_lshl_b32 s{sT2}, s{sT0}, 13
        """)
        srd(e, R2, pV, sT2, 65536)
        e(f"s_lshl_b32 s{sT1}, s{sHP}, 14\ns_add_u32 s{sT2}, s{sT2}, s{sT1}")
        srd(e, R1, pK, sT2, 16384)
        e(f"""
        v_and_b32 v20, 15, v1
        v_xor_b32 v20, v20, v22
        v_lshlrev_b32 v20, 4, v20
        v_lshl_add_u32 v8, v22, 8, v20
        v_xor_b32 v9, 64, v8
        v_xor_b32 v10, 0x80, v8
        v_xor_b32 v11, 0xc0, v8
        s_lshl_b32 s{sKB}, s{sWL}, 13
        s_lshl_b32 s{sVB}, s{sWL}, 10
        s_add_u32 s{sT0}, s{sKB}, {KR1}
        v_lshl_add_u32 v19, v1, 4, s{sT0}
        v_add_u32 v18, {VR - KR1}, v19
        s_mul_i32 s{sT0}, s{sKG}, 1179648
        """)
        srd(e, R4, pWO, sT0, 1179648)
        e(f"""
        s_mul_i32 s{sT1}, s{sWL}, 36864
        s_add_u32 s{sT0}, s{sT0}, s{sT1}
        s_lshl_b32 s{sT1}, s{sHP}, 8
        s_add_u32 s{sT0}, s{sT0}, s{sT1}
        s_sub_u32 s{sT2}, 4718592, s{sT0}
        """)
        srd(e, R3, pWO, sT0, f"s{sT2}")
        e(f"""
        s_and_b32 s{sT0}, s{sKG}, 2
        v_xor_b32 v20, s{sT0}, v22
        v_mul_u32_u24 v23, 1152, v23
        v_lshl_add_u32 v23, v20, 6, v23
        v_lshl_add_u32 v13, v21, 4, v23
        v_add_u32 v14, 3584, v13
        v_xor_b32 v16, 32, v13
        v_add_u32 v15, 7168, v16
        v_add_u32 v16, 10752, v16
        v_bfe_u32 v20, v1, 1, 2
        v_bfe_u32 v21, v1, 3, 1
        v_lshl_add_u32 v20, v21, 3, v20
        v_bfe_u32 v21, v1, 4, 1
        v_lshl_add_u32 v20, v21, 2, v20
        v_bfe_u32 v22, v1, 5, 1
        v_lshl_add_u32 v20, v22, 4, v20
        v_mul_u32_u24 v20, 1152, v20
        v_and_b32 v22, 1, v1
        v_lshl_add_u32 v20, v22, 4, v20
        s_mul_i32 s{sT0}, s{sHP}, 224
        s_sub_u32 s{sT0}, 1024, s{sT0}
        v_add_u32 v17, s{sT0}, v20
        s_lshl_b32 s{sT0}, s{sBG}, 4
        v_and_b32 v20, 15, v1
        v_add_u32 v20, s{sT0}, v20
        v_mul_u32_u24 v20, 1152, v20
        v_lshl_add_u32 v21, v21, 7, s{sT1}
        v_add_u32 v31, v20, v21
        v_mov_b32 v22, 1024
        v_cmp_gt_u32 vcc, 32, v1
        v_cndmask_b32 v21, v22, v21, vcc
        v_add_u32 v25, v20, v21
        """)
        self.head_offsets([(sH, 147456), (sHV, 8192)])
        if c.nstag > 1:
            e(f"s_and_b32 s{sT0}, s{sBG}, {c.nstag - 1}")
            for o in range(1, c.nstag): e(f"s_cmp_eq_u32 s{sT0}, {o}\ns_cbranch_scc1 L_hv{o}")
        saved = copy.deepcopy(e.vm)
        for o in range(c.nstag):
            e.vm = copy.deepcopy(saved)
            if o: e(f"L_hv{o}:")
            self.helper_body(o * c.sstep)

    def compute(self):
        e = self.e; c = self.c
        e.vm.__init__('vmcnt', 63); e.lg.__init__('lgkmcnt', 15)
        ACC, FA, FB, D = 32, 160, 192, c.dist
        e("L_compute:")
        e(f"""
        v_lshlrev_b32 v2, 2, v0
        v_add_u32 v2, {FULLA}, v2
        v_mov_b32 v3, 0
        ds_write_b32 v2, v3
        ds_write_b32 v2, v3 offset:{FREEA - FULLA}
        ds_write_b32 v2, v3 offset:{FREEB - FULLA}
        s_waitcnt lgkmcnt(0)
        """)
        self.pt('ka')
        e("s_barrier")
        self.pt('lc')
        e(f"s_lshl_b32 s{sT0}, s2, 8\ns_add_u32 s{sT0}, s{sT0}, {c.ws_t}")
        srd(e, R5, pWS, sT0, 256)
        e(f"v_and_b32 v16, 31, v1\nv_lshlrev_b32 v13, 2, v16")
        e(f"""
        s_lshl_b32 s{sT0}, s{sBLK}, 5
        s_add_u32 s{sT2}, s{sT0}, s{sB}
        s_lshl_b32 s{sT0}, s{sT2}, 7
        s_add_u32 s{sT0}, s{sT0}, {c.ws_e}
        """)
        srd(e, R2, pWS, sT0, 128)
        if c.codepf:
            e(f"""
            s_getpc_b64 s[90:91]
            L_pc:
            s_lshr_b32 s{sT0}, s2, 3
            s_lshl_b32 s{sT0}, s{sT0}, 2
            s_add_u32 s{sT0}, s{sT0}, s{sWL}
            s_lshl_b32 s{sT0}, s{sT0}, 9
            v_and_b32 v17, 3, v1
            v_lshl_add_u32 v17, v17, 7, s{sT0}
            v_min_u32 v17, L_end - {NAME}_kernel, v17
            s_sub_u32 s90, s90, L_pc - {NAME}_kernel
            s_subb_u32 s91, s91, 0
            v_mov_b32 v19, s91
            v_add_co_u32 v18, vcc, s90, v17
            v_addc_co_u32 v19, vcc, 0, v19, vcc
            """)
            e.vmem("global_load_dword v28, v[18:19], off", 'code')
        e.vmem(f"buffer_load_dword v14, off, {S(R2)}, 0 sc1", 'epoch')
        e(f"""
        v_and_b32 v21, 3, v1
        v_mul_u32_u24 v22, 260, v21
        v_add_u32 v22, {FULLA}, v22
        s_lshl_b32 s{sT0}, s{sWL}, 8
        s_add_u32 s{sT0}, s{sT0}, {FREEA}
        v_lshl_add_u32 v23, v1, 2, s{sT0}
        s_mov_b32 m0, s{sT0}
        v_add_u32 v23, {FREEB - FREEA}, v23

        s_lshl_b32 s{sOWN}, s{sKG}, 2
        s_add_u32 s{sOWN}, s{sOWN}, s{sHP}
        s_lshl_b32 s{sOWN}, s{sOWN}, 7
        s_lshl_b32 s{sT0}, s{sT2}, 17
        s_lshl_b32 s{sT1}, s{sKG}, 15
        s_add_u32 s{sT0}, s{sT0}, s{sT1}
        s_add_u32 s{sT0}, s{sT0}, {c.ws_o}
        """)
        srd(e, R0, pWS, sT0, 32768)
        e(f"""
        s_lshl_b32 s{sT0}, s{sT2}, 2
        s_add_u32 s{sT0}, s{sT0}, s{sHP}
        s_lshl_b32 s{sT0}, s{sT0}, 16
        s_add_u32 s{sT0}, s{sT0}, {c.ws_p}
        """)
        srd(e, R3, pWS, sT0, 65536)
        e(f"""
        s_mul_i32 s{sT0}, s{sB}, 73728
        s_mul_i32 s{sT1}, s{sBLK}, 1152
        s_add_u32 s{sT0}, s{sT0}, s{sT1}
        s_sub_u32 s{sT1}, 2359296, s{sT0}
        """)
        srd(e, R4, pOUT, sT0, f"s{sT1}")
        e(f"""
        v_lshrrev_b32 v17, 4, v1
        v_and_b32 v18, 15, v1
        v_bfe_u32 v19, v1, 2, 2
        v_lshlrev_b32 v19, 6, v19
        v_and_b32 v20, 1, v17
        v_lshl_add_u32 v19, v20, 5, v19
        v_lshl_add_u32 v19, v21, 3, v19
        v_lshl_add_u32 v2, v17, 11, v19
        v_lshrrev_b32 v19, 5, v1
        v_lshlrev_b32 v19, 9, v19
        v_lshl_add_u32 v3, v16, 3, v19
        v_lshrrev_b32 v19, 1, v18
        v_xor_b32 v19, v19, v17
        v_lshlrev_b32 v19, 4, v19
        v_lshl_add_u32 v19, v18, 7, v19
        s_lshl_b32 s{sT0}, s{sWL}, 12
        v_add_u32 v6, s{sT0}, v19
        v_lshrrev_b32 v19, 1, v17
        v_xor_b32 v19, v19, v18
        v_lshlrev_b32 v19, 4, v19
        v_lshl_add_u32 v19, v18, 8, v19
        v_lshl_add_u32 v19, v20, 3, v19
        s_lshl_b32 s{sT0}, s{sWL}, 13
        s_add_u32 s{sKB}, s{sT0}, {KR1}
        s_add_u32 s{sVB}, s{sT0}, {VR}
        v_add_u32 v9, s{sKB}, v19
        v_xor_b32 v19, v17, v18
        v_lshlrev_b32 v19, 4, v19
        v_lshl_add_u32 v19, v18, 8, v19
        v_add_u32 v12, s{sVB}, v19
        v_lshlrev_b32 v10, 4, v1
        v_lshlrev_b32 v11, 2, v1
        v_add_u32 v11, 4096, v11
        s_mov_b32 s{sC}, 0x3e0293ee
        """)
        for a in range(4): e(f"s_add_u32 s{sT0}, s{sHP}, {a}\ns_and_b32 s{sT0}, s{sT0}, 3\ns_lshl_b32 s{sH + a}, s{sT0}, 13")

        def fread(): e.ds("ds_read_b32 v21, v22", "full")
        def fcmp(val): e.wait(lg="full"); e(f"v_cmp_gt_u32 vcc, {val}, v21")
        def fbranch(val):
            if c.freerun and 1 < val <= 18: return
            u = self.U()
            e(f"s_cbranch_vccnz L_cs{u}\nL_co{u}:")
            self.ool.append(f"""
            L_cs{u}:
            s_mov_b32 s{sSPIN}, 0
            L_cl{u}:
            ds_read_b32 v21, v22
            s_add_u32 s{sSPIN}, s{sSPIN}, 1
            s_cmp_lt_u32 s{sSPIN}, 0x100000
            s_waitcnt lgkmcnt(0)
            s_cbranch_scc0 L_co{u}
            v_cmp_gt_u32 vcc, {val}, v21
            s_cbranch_vccnz L_cl{u}
            s_branch L_co{u}
            """)
        def fcheck(val): fcmp(val); fbranch(val)
        def ffree(val): e(f"v_mov_b32 v20, {val}"); e.ds("ds_write_b32 v23, v20")
        FREE_DMA = ("v", f"buffer_load_dword off, {S(R5)}, s{sFV} lds", None)
        def emit_op(op):
            if op[0] == 's': e(op[1])
            elif op[0] == 'v': e.vmem(op[1], op[2])
            elif op[0] == 'd': e.ds(op[1], op[2])
            else: op[1]()
        fixed = {}
        def fx(pos, op):
            assert pos not in fixed, pos
            fixed[pos] = [op] if op else []

        def qread(g, jj):
            j, a = g >> 4, g & 15
            base = WS_[j % 6]; hi = base >= 64*KB
            e.ds(f"ds_read_b64_tr_b16 {vr(FA + 4*(g & 7) + 2*jj, 2)}, v{(16 if hi else 4) + (a & 1)} offset:{base - hi*64*KB + (a >> 3)*8192 + jj*1024 + ((a & 7) >> 1)*256}", f"a{g}")
        def xread_op(j, rt):
            base = XS_[(j >> 1) % 3]; hi = base >= 96*KB
            return ("d", f"ds_read_b128 {vr(FB + 8*(j & 1) + 4*rt)}, v{[[7, 18], [24, 26]][rt][hi] + (j & 1)} offset:{base - hi*96*KB}", f"x{j}")
        e(f"""
        v_mov_b32 v4, v2
        v_xor_b32 v5, 32, v2
        v_add_u32 v16, {64*KB}, v4
        v_add_u32 v17, {64*KB}, v5
        s_and_b32 s{sT0}, s{sKG}, 1
        s_lshl_b32 s{sT0}, s{sT0}, 11
        v_xor_b32 v7, s{sT0}, v6
        v_xor_b32 v8, 64, v7
        v_add_u32 v18, {96*KB}, v7
        v_add_u32 v19, {96*KB}, v8
        v_xor_b32 v24, 0x800, v7
        v_xor_b32 v25, 0x800, v8
        v_xor_b32 v26, 0x800, v18
        v_xor_b32 v27, 0x800, v19
        """)
        fread(); fcheck(1)
        self.pt('hs0')
        emit_op(xread_op(0, 0)); emit_op(xread_op(0, 1))
        for g in range(D): qread(g, 0); qread(g, 1)
        offs = [o * c.sstep for o in range(c.nstag)]
        free_odd = {b + o for b in c.bursts + ([c.t0_at, c.t1_at or 0] if c.t0_at is not None else []) for o in offs} | {c.wo0_at} | ({x for r in c.sched for x in r} if c.sched else set())
        for p in range(1, 19):
            gB = 16*p - D
            if p >= c.free_ds:
                fx(2*(gB - 4), ("s", f"v_mov_b32 v20, {p}")); fx(2*(gB + 1), ("d", "ds_write_b32 v23, v20", None))
            elif p % 2 == 0 or p in free_odd:
                fx(2*(gB - 4), ("s", f"s_mov_b32 s{sFV}, {4*p}")); fx(2*(gB + c.free_pos), FREE_DMA)
            if p < 18:
                fx(2*(gB - 8), ("f", fread))
                fx(2*gB - 2, ("f", lambda p=p: fcmp(p + 1)))
                fx(2*gB, ("f", lambda p=p: (fbranch(p + 1), self.pt(f'hs{p}'))))
                fx(2*(gB + 2), xread_op(p, 0)); fx(2*(gB + 3), xread_op(p, 1))
        fx(41, ("f", lambda: (e.wait(vm='epoch'), e(f"v_readfirstlane_b32 s{sE}, v14"))))
        for g in range(288):
            j, a = g >> 4, g & 15
            for rt in range(2):
                if rt == 0 and a == 0: e.wait(lg=f"x{j}")
                if rt == 0 and g % 2 == 0: e.wait(lg=f"a{g + 1}")
                acc = vr(ACC + (2*a + rt)*4)
                e(f"{MF} {acc}, {vr(FA + 4*(g & 7))}, {vr(FB + 8*(j & 1) + 4*rt)}, {acc if j else 0}")
                for op in fixed.get(2*g + rt, []): emit_op(op)
                if g + D < 288: qread(g + D, rt)
        self.pt('qpend')
        QB = [32, 96]
        def qcvt(r, e=e):
            for s in range(4):
                for rt in range(2):
                    for u in range(2):
                        for q in range(2):
                            src = ACC + 64*r + 16*s + 8*u + 4*rt + 2*q
                            e(f"v_cvt_pk_bf16_f32 v{QB[r] + 8*s + 4*rt + 2*u + q}, v{src}, v{src+1}")
        SX, TM, PR, KF = [64, 128], [88, 152], 192, [FA, 208]
        fread()
        for k in range(8): e(f"v_xor_b32 v{24+k}, {32*k}, v9" if k else "v_mov_b32 v24, v9")
        qcvt(0)
        tail = f"""s_add_u32 s{sTAG}, s{sE}, 3
        s_lshl_b32 s{sT2}, s{sKG}, 12
        s_lshl_b32 s{sU}, s{sKG}, 14"""
        for Tp in range(1, 4):
            tail += f"""
        s_xor_b32 s{sT0}, s{sKG}, {Tp}
        s_lshl_b32 s{sT1}, s{sT0}, 14
        s_add_u32 s{sSND + Tp}, s{sT1}, s{sT2}
        s_lshl_b32 s{sT1}, s{sT0}, 12
        s_add_u32 s{sH + 4 + Tp}, s{sT1}, s{sU}"""
        tail += f"""
        s_mov_b32 s{sT2}, s{sU}
        s_bitcmp1_b32 s{sKG}, 1
        s_cselect_b64 s[{sM1}:{sM1+1}], -1, 0
        s_mov_b32 s{sM0}, 0x00ff00ff
        s_mov_b32 s{sM0+1}, 0x00ff00ff
        s_and_b32 s{sT0}, s{sKG}, 1
        s_mul_i32 s{sT0}, s{sT0}, 36864
        s_lshr_b32 s{sT1}, s{sKG}, 1
        s_lshl_b32 s{sU}, s{sT1}, 7
        s_add_u32 s{sU}, s{sU}, s{sT0}
        s_mul_i32 s{sT1}, s{sT1}, 18432
        s_add_u32 s{sT0}, s{sT0}, s{sT1}
        s_lshl_b32 s{sT1}, s{sHP}, 8
        s_add_u32 s{sU}, s{sU}, s{sT1}
        s_lshl_b32 s{sT1}, s{sHP}, 5
        s_add_u32 s{sT0}, s{sT0}, s{sT1}
        s_add_u32 s{sSND}, s{sT0}, 1024
        v_and_b32 v7, 15, v1
        v_mul_u32_u24 v7, 2304, v7
        v_bfe_u32 v8, v1, 4, 1
        v_lshl_add_u32 v7, v8, 5, v7
        v_lshrrev_b32 v8, 5, v1
        v_lshl_add_u32 v7, v8, 4, v7
        v_and_b32 v6, 7, v1
        v_mul_u32_u24 v6, 2304, v6
        v_lshrrev_b32 v8, 4, v1
        v_lshl_add_u32 v6, v8, 3, v6
        v_bfe_u32 v8, v1, 3, 1
        v_lshl_add_u32 v6, v8, 2, v6
        v_and_b32 v8, 3, v1
        v_min_u32 v8, 2, v8
        v_add_u32 v8, 1, v8
        v_xor_b32 v8, s{sKG}, v8
        v_lshlrev_b32 v8, 12, v8
        v_add_u32 v8, {c.lp_unit*1024 + 1020}, v8"""
        e(tail)
        fcheck(19)
        self.pt('Kok')
        def kreads(r):
            for s in range(4):
                for kt in range(2):
                    for hf in range(2):
                        e.ds(f"ds_read_b64 {vr(KF[r] + 8*s + 4*kt + 2*hf, 2)}, v{24 + 2*s + hf} offset:{(KR - KR1)*(1 - r) + kt*4096}", f"k{r}{s}{kt}")
        kreads(0)
        fread()
        C1 = []; qcvt(1, C1.append)
        def smfma(r):
            L = []
            for s in range(4):
                for kt in range(2):
                    for rt in range(2):
                        acc = vr(SX[r] + 8*kt + 4*rt)
                        L.append((f"k{r}{s}{kt}", f"{MF} {acc}, {vr(KF[r] + 8*s + 4*kt)}, {vr(QB[r] + 8*s + 4*rt)}, {acc if s else 0}"))
            return L
        def softmax(r):
            Sx, TMP = SX[r], TM[r]
            t0, t1, t2, t3 = TMP, TMP+1, TMP+2, TMP+3
            def val(rt, i): return Sx + 8*(i >> 2) + 4*rt + (i & 3)
            L = []
            for rt in range(2):
                t = TMP + 2*rt
                L += [f"v_max3_f32 v{t}, v{val(rt,0)}, v{val(rt,1)}, v{val(rt,2)}", f"v_max3_f32 v{t+1}, v{val(rt,3)}, v{val(rt,4)}, v{val(rt,5)}"]
            for rt in range(2): L.append(f"v_max3_f32 v{TMP + 2*rt}, v{TMP + 2*rt}, v{val(rt,6)}, v{val(rt,7)}")
            for rt in range(2): L.append(f"v_max_f32 v{TMP + 2*rt}, v{TMP + 2*rt}, v{TMP + 2*rt + 1}")
            xred = lambda op: [f"v_permlane32_swap_b32 v{t0}, v{t2}", f"{op} v{t0}, v{t0}, v{t2}", f"v_mov_b32 v{t1}, v{t0}",
                               f"v_permlane16_swap_b32 v{t0}, v{t1}", f"{op} v{t0}, v{t0}, v{t1}"]
            L += xred("v_max_f32")
            L += [f"v_mul_f32 v{t0}, s{sC}, v{t0}", f"v_mov_b32 v{t2}, v{t0}", f"v_permlane32_swap_b32 v{t0}, v{t2}"]
            for rt in range(2): L += [f"v_fma_f32 v{val(rt,i)}, v{val(rt,i)}, s{sC}, -v{TMP + 2*rt}" for i in range(8)]
            for rt in range(2): L += [f"v_exp_f32 v{val(rt,i)}, v{val(rt,i)}" for i in range(8)]
            for rt in range(2): L.append(f"v_pk_add_f32 {vr(TMP + 2*rt, 2)}, {vr(val(rt,0), 2)}, {vr(val(rt,2), 2)}")
            for k in (4, 6):
                for rt in range(2): L.append(f"v_pk_add_f32 {vr(TMP + 2*rt, 2)}, {vr(TMP + 2*rt, 2)}, {vr(val(rt,k), 2)}")
            L += [f"v_add_f32 v{t0}, v{t0}, v{t1}", f"v_add_f32 v{t2}, v{t2}, v{t3}"]
            L += xred("v_add_f32")
            L += [f"v_rcp_f32 v{t0}, v{t0}", f"v_mov_b32 v{t2}, v{t0}", f"v_permlane32_swap_b32 v{t0}, v{t2}"]
            for rt in range(2):
                L += [f"v_pk_mul_f32 {vr(val(rt,i), 2)}, {vr(val(rt,i), 2)}, {vr(TMP + 2*rt, 2)} op_sel_hi:[1,0]" for i in range(0, 8, 2)]
            for rt in range(2):
                L += [f"v_cvt_pk_bf16_f32 v{PR + 8*r + 4*rt + q}, v{val(rt,2*q)}, v{val(rt,2*q+1)}" for q in range(4)]
                L.append(f"buffer_store_dwordx4 {vr(PR + 8*r + 4*rt)}, v10, {S(R0)}, s{sH} offen offset:{(2*r + rt)*1024} sc1")
            return L
        def put(x): e.vmem(x, "pst") if x.startswith("buffer") else e(x)
        for n, (tag, m) in enumerate(smfma(0)):
            e.wait(lg=tag); e(m)
            e(C1.pop(0)); e(C1.pop(0))
            if n == 7:
                fcheck(20); self.pt('K1ok'); kreads(1); ffree(20)
        A, B = softmax(0), softmax(1)
        for n, (tag, m) in enumerate(smfma(1)):
            e.wait(lg=tag); e(m)
            if n >= 3: put(A.pop(0)); put(A.pop(0))
        fread()
        while A or B:
            if B: put(B.pop(0))
            if A: put(A.pop(0))
        def xorall(dst, base, init):
            ops = [f"v_bitop3_b32 v{dst}, v{base}, v{base + 1}, {init} bitop3:0x96"]
            ops += [f"v_bitop3_b32 v{dst}, v{base + 2*i}, v{base + 2*i + 1}, v{dst} bitop3:0x96" for i in range(1, 8)]
            return ops
        for x in xorall(15, PR, f"s{sTAG}"): e(x)
        e.vmem(f"buffer_store_dword v15, v11, {S(R0)}, s{sH} offen sc1")
        self.pt('sm')

        PT = [32, 48, 64, 80]; NA = 96; VF = 104; VWA = 136; VWB = 152
        def PA(nt, rt): return (NA + 4*rt) if nt == 8 else PT[2*(nt >> 2) + rt] + 4*(nt & 3)
        STEP = [(hd, nt) for hd in range(6) for nt in NTO]
        STEP += [(6, nt) for nt in NTO[:5]] + [(7, nt) for nt in NTO] + [(6, nt) for nt in NTO[5:]] if c.early else [(hd, nt) for hd in (6, 7) for nt in NTO]
        START = [[h for h, _ in STEP].index(hd) for hd in range(8)]
        VS = [192 if hd == 6 and c.early else VF for hd in range(8)]
        def pread(g, jj):
            (hd, nt), sg = STEP[g >> 2], g & 3
            base = WOS[hd % 3]
            if nt < 8:
                hi = base >= 64*KB
                a, off = (16 if hi else 4) + (nt & 1), base - hi*64*KB + sg*8192 + jj*1024 + (nt >> 1)*256
            else:
                hi = base > 0
                a, off = 18 + hi, base - hi*WOS[1] + sg*1024 + jj*256
            e.ds(f"ds_read_b64_tr_b16 {vr(FA + 4*(g & 7) + 2*jj, 2)}, v{a} offset:{off}", f"a{g}")
        def vread(hd, sg, kt):
            e.ds(f"ds_read_b128 {vr(VS[hd] + 8*sg + 4*kt)}, v{24 + sg} offset:{kt*4096}", f"vf{hd}_{sg}")
        for sg in range(4): e(f"v_xor_b32 v{24 + sg}, {64*sg}, v12" if sg else "v_mov_b32 v24, v12")
        e(f"v_add_u32 v18, 32768, v3\nv_add_u32 v19, {32768 + WOS[1]}, v3")
        fcheck(21)
        self.pt('h0')
        for sg in range(4): vread(0, sg, 0); vread(0, sg, 1)
        for g in range(D): pread(g, 0); pread(g, 1)
        if not c.safebar: e("s_barrier")
        fixed.clear(); soft = {}
        def at(N, ops): soft.setdefault(N, []).extend(ops)
        VN = {}
        if c.safebar: fx((0, 0), ("f", lambda: (e.wait(lg="vf0_3"), e("s_barrier"))))
        for hd in range(1, 8):
            N = START[hd]
            assert D == 6
            fx((N - 4, 0), ("d", "ds_read_b32 v21, v22", "full"))
            fx((N - 2, 0), ("f", lambda hd=hd: fcmp(20 + 2*hd + (hd == 1))))
            fx((N - 2, 1), ("f", lambda hd=hd: (fbranch(20 + 2*hd + (hd == 1)), self.pt(f'h{hd}'))))
            if hd == 6 and c.early: N -= c.early
            VN[hd] = N - 1
            if hd > 1:
                fx((N - 2, 3), ("d", "ds_read_b32 v21, v22", "full"))
                fx((N - 2, 8), ("f", lambda hd=hd: (self.pt(f'v{hd}q'), fcmp(21 + 2*hd))))
                fx((N - 2, 9), ("f", lambda hd=hd: (fbranch(21 + 2*hd), self.pt(f'v{hd}'))))
            if hd < 7: fx((N, c.safebar if c.safebar else 0 if (N, 0) not in fixed else 3), ("f", lambda hd=hd: (c.safebar and e.wait(lg=f"vf{hd}_3"), self.pt(f'b{hd}q'), e("s_barrier"), self.pt(f'b{hd}'))))
        def ploads(a):
            return [f"buffer_load_dwordx4 {vr(PR + 16*a + 4*k)}, v10, {S(R0)}, s{sH + a} offen offset:{k*1024} sc1" for k in range(4)] + \
                   [f"buffer_load_dword v14, v11, {S(R0)}, s{sH + a} offen sc1"]
        def pcheck(a):
            ops = xorall(14, PR + 16*a, "v14")
            L = [("f", lambda: (self.pt(f'c{a}q'), e.wait(vm=f"P{a}"), e(ops[0])))] + [("s", x) for x in ops[1:]]
            L.append(("f", lambda: (e(f"v_cmp_ne_u32 vcc, s{sTAG}, v14\ns_cbranch_vccnz L_p_spin{a}\nL_p_ok{a}:"), self.pt(f'c{a}'))))
            nl = "\n"
            self.ool.append(f"""
            L_p_spin{a}:
            s_mov_b32 s{sSPIN}, 0
            L_p_lp{a}:
            {nl.join(ploads(a))}
            s_add_u32 s{sSPIN}, s{sSPIN}, 1
            s_cmp_lt_u32 s{sSPIN}, 0x10000
            s_waitcnt vmcnt(0)
            s_cbranch_scc0 L_p_ok{a}
            {nl.join(ops)}
            v_cmp_ne_u32 vcc, s{sTAG}, v14
            s_cbranch_vccnz L_p_lp{a}
            s_branch L_p_ok{a}
            """)
            return L
        for a in range(1, 4):
            at(c.pl_at[a - 1], [("v", x, f"P{a}") for x in ploads(a)])
            assert c.pl_at[a - 1] < c.pc_at[a - 1] <= 18*a - 1 and (a == 1 or c.pl_at[a - 1] > c.pc_at[a - 2] + 2)
            at(c.pc_at[a - 1], pcheck(a))
        NF = 28
        nin = []
        for rt in range(2):
            a = NA + 4*rt
            nin += [f"v_cvt_pk_bf16_f32 v{a}, v{a}, v{a+1}", f"v_cvt_pk_bf16_f32 v{a+1}, v{a+2}, v{a+3}"]
        for rt in range(2):
            a = NA + 4*rt
            nin += [f"v_mov_b32_dpp v{a+2}, v{a} row_ror:8 row_mask:0xf bank_mask:0xf", f"v_mov_b32_dpp v{a+3}, v{a+1} row_ror:8 row_mask:0xf bank_mask:0xf"]
        for rt in range(2):
            a = NA + 4*rt
            nin += [f"v_cndmask_b32 v{a}, v{a+3}, v{a}, s[{sM0}:{sM0+1}]", f"v_cndmask_b32 v{a+1}, v{a+1}, v{a+2}, s[{sM0}:{sM0+1}]"]
        for rt in range(2):
            a = NA + 4*rt
            nin += [f"v_cndmask_b32 v{NF + rt}, v{a}, v{a+1}, s[{sM1}:{sM1+1}]", f"v_cndmask_b32 v{NF + 2 + rt}, v{a+1}, v{a}, s[{sM1}:{sM1+1}]"]
        E0 = 4 if c.early else 0
        at(66 - E0, [("s", x) for x in nin])
        def send(Tp, k):
            d = PT[Tp]
            ops = [("s", f"v_cvt_pk_bf16_f32 v{d + i + k}, v{d + 2*i}, v{d + 2*i + 1}") for i in range(3*k, min(3*k + 3, 8))]
            if k == 2: ops.append(("s", f"v_mov_b32 v{d + 10}, v{NF + Tp}"))
            ops.append(("s", f"v_mov_b32 v{d + 4*k + 3}, s{sTAG}"))
            if not (c.x_nounit0 and k == 0): ops.append(("v", f"buffer_store_dwordx4 {vr(d + 4*k)}, v10, {S(R3)}, s{sSND + Tp} offen offset:{1024*k} sc1", None))
            return ops
        for k in range(3):
            at(68 - E0 + k, send(2, k) + send(3, k))
            at(72 + k, send(1, k))
        q = []
        def s2(N, rt):
            hd, nt = STEP[N]
            if hd >= 2 and hd % 2 == 0 and N == START[hd]: assert not q, "P check still queued"
            acc = vr(PA(nt, rt))
            e(f"{MF} {acc}, {vr(VWB + 4*(N & 1))}, {vr(PR + 8*hd + 4*rt)}, {acc if hd else 0}")
        def cvt(N, k): e(f"v_cvt_pk_bf16_f32 v{VWB + 4*(N & 1) + k}, v{VWA + 8*(N & 1) + 2*k}, v{VWA + 8*(N & 1) + 2*k + 1}")
        ORD = ['M0', 'M1', 'Sa', 'M2', 'M3', 'M4', 'M5', 'Sb', 'M6', 'M7']
        for N in range(74):
            hd = STEP[min(N, 71)][0]
            q += soft.get(N, [])
            for slot, nm in enumerate(ORD):
                used = 0
                if nm[0] == 'S':
                    rt = int(nm == 'Sb')
                    if N >= 2: s2(N - 2, rt)
                    if 1 <= N <= 72: cvt(N - 1, 2*rt); cvt(N - 1, 2*rt + 1); used += 2
                elif N < 72:
                    m = int(nm[1]); g, kt = 4*N + (m >> 1), m & 1
                    if N == START[hd] and kt == 0: e.wait(lg=f"vf{hd}_{g & 3}")
                    if m in (0, 4): e.wait(lg=f"a{g + 1}")
                    acc = vr(VWA + 8*(N & 1) + 4*kt)
                    e(f"{MF} {acc}, {vr(VS[hd] + 8*(g & 3) + 4*kt)}, {vr(FA + 4*(g & 7))}, {acc if g & 3 else 0}")
                    for op in fixed.get((N, slot), []): emit_op(op); used += 1
                    if g + D < 288: pread(g + D, kt); used += 1
                    for h2 in VN:
                        if VN[h2] == N: vread(h2, g & 3, kt); used += 1
                    if m in (3, 7): used += 1
                else: continue
                while used < 2 and q:
                    emit_op(q.pop(0)); used += 1
        self.pt('p2end')
        for op in q + soft[74]: emit_op(op)
        RB = 104
        e(f"s_mov_b32 s{sSPIN}, 0")
        if c.pts and 'ack' in c.pts: e("s_waitcnt vmcnt(0)"); self.pt('ack')
        if c.fin == 'light':
            e(f"""
        L_fin_lp:
        buffer_load_dword v9, v8, {S(R3)}, s{sT2} offen sc1
        s_add_u32 s{sSPIN}, s{sSPIN}, 1
        s_cmp_lt_u32 s{sSPIN}, 0x10000
        s_waitcnt vmcnt(0)
        s_cbranch_scc0 L_fin_full
        v_cmp_ne_u32 vcc, s{sTAG}, v9
        s_cbranch_vccnz L_fin_lp
        L_fin_full:
        """)
            self.pt('lp')
            for a in range(1, 4):
                for k in range(3): e(f"buffer_load_dwordx4 {vr(RB + 12*(a - 1) + 4*k)}, v10, {S(R3)}, s{sH + 4 + a} offen offset:{1024*k} sc1" if not (c.x_nounit0 and k == 0) else f"v_mov_b32 v{RB + 12*(a - 1) + 3}, s{sTAG}")
            if c.x_nounit0: e("s_waitcnt vmcnt(0)")
            for n in range(9):
                e(f"s_waitcnt vmcnt({8 - n})")
                e(f"v_xor_b32 v9, s{sTAG}, v{RB + 3}" if n == 0 else f"v_bitop3_b32 v9, v{RB + 4*n + 3}, s{sTAG}, v9 bitop3:0xbe")
            e(f"""
        v_cmp_ne_u32 vcc, 0, v9
        s_cmp_lt_u32 s{sSPIN}, 0x10000
        s_cbranch_scc0 L_fin_ok
        s_cbranch_vccnz L_fin_lp
        L_fin_ok:
        """)

        else:
            if c.fin == 'hyb':
                e("L_fin_l0:")
                for k in range(c.lp_depth): e(f"buffer_load_dword v{144 + k}, v8, {S(R3)}, s{sT2} offen sc1\ns_sleep {c.lp_sleep}")
                e("L_fin_l1:")
                for k in range(c.lp_depth):
                    e(f"""
                    s_waitcnt vmcnt({c.lp_depth - 1})
                    v_cmp_ne_u32 vcc, s{sTAG}, v{144 + k}
                    s_cbranch_vccz L_fin_l2
                    buffer_load_dword v{144 + k}, v8, {S(R3)}, s{sT2} offen sc1
                    """)
                e(f"""
                s_add_u32 s{sSPIN}, s{sSPIN}, 1
                s_cmp_lt_u32 s{sSPIN}, 0x8000
                s_cbranch_scc1 L_fin_l1
                L_fin_l2:
                """)
                self.pt('lp')
                e(f"s_mov_b32 s{sT0}, 0\nL_fin_lp:")
            else: e(f"s_mov_b32 s{sT0}, 0\ns_waitcnt vmcnt(0)\nL_fin_lp:")
            for a in range(1, 4):
                e(f"s_bitcmp1_b32 s{sT0}, {a}\ns_cbranch_scc1 L_fin_s{a}")
                for k in range(3): e(f"buffer_load_dwordx4 {vr(RB + 12*(a - 1) + 4*k)}, v10, {S(R3)}, s{sH + 4 + a} offen offset:{1024*k} sc1")
                e(f"L_fin_s{a}:")
            e(f"s_add_u32 s{sSPIN}, s{sSPIN}, 1\ns_waitcnt vmcnt(0)")
            for a in range(1, 4):
                b = RB + 12*(a - 1)
                e(f"""
                v_xor_b32 v9, s{sTAG}, v{b + 3}
                v_bitop3_b32 v9, v{b + 7}, s{sTAG}, v9 bitop3:0xbe
                v_bitop3_b32 v9, v{b + 11}, s{sTAG}, v9 bitop3:0xbe
                v_cmp_ne_u32 vcc, 0, v9
                s_cbranch_vccnz L_fin_n{a}
                s_bitset1_b32 s{sT0}, {a}
                L_fin_n{a}:
                """)
            e(f"""
            s_cmp_lt_u32 s{sSPIN}, 0x10000
            s_cbranch_scc0 L_fin_ok
            s_cmp_eq_u32 s{sT0}, 14
            s_cbranch_scc0 L_fin_lp
            L_fin_ok:
            """)
        self.pt('cf')
        e(f"""
        s_cmp_eq_u32 s{sOWN}, 0
        s_cbranch_scc0 L_noep
        s_add_u32 s{sT1}, s{sE}, 4
        v_mov_b32 v15, s{sT1}
        buffer_store_dword v15, v13, {S(R2)}, 0 offen sc1
        L_noep:
        s_mov_b32 s{sT0}, 0xffff0000
        v_lshlrev_b32 v100, 16, v{NF}
        v_and_b32 v101, s{sT0}, v{NF}
        """)
        T = 144
        for a in range(3):
            for hf in range(2):
                for i in range(4*hf, 4*hf + 4):
                    d = RB + 12*a + i + i // 3
                    e(f"v_lshlrev_b32 v{T + 2*(i&3)}, 16, v{d}\nv_and_b32 v{T + 1 + 2*(i&3)}, s{sT0}, v{d}")
                for i in range(4*hf, 4*hf + 4):
                    e(f"v_add_f32 v{PT[0] + 2*i}, v{PT[0] + 2*i}, v{T + 2*(i&3)}\nv_add_f32 v{PT[0] + 2*i + 1}, v{PT[0] + 2*i + 1}, v{T + 1 + 2*(i&3)}")
            d = RB + 12*a + 10
            e(f"v_lshlrev_b32 v{T}, 16, v{d}\nv_and_b32 v{T + 1}, s{sT0}, v{d}\nv_add_f32 v100, v100, v{T}\nv_add_f32 v101, v101, v{T + 1}")
        for i in range(8): e(f"v_cvt_pk_bf16_f32 v{T + i}, v{PT[0] + 2*i}, v{PT[0] + 2*i + 1}")
        e("v_cvt_pk_bf16_f32 v100, v100, v101")
        for u in range(2):
            for q in range(2): e(f"v_permlane16_swap_b32 v{T + 4*u + q}, v{T + 4*u + 2 + q}")
        if c.noout < 1: e(f"buffer_store_dword v100, v6, {S(R4)}, s{sSND} offen {c.pol_out}")
        for u in range(2):
            if c.noout < 2: e(f"buffer_store_dwordx4 {vr(T + 4*u)}, v7, {S(R4)}, s{sU} offen offset:{64*u} {c.pol_out}")
        self.pt('end')
        self.dump(False)
        e("s_endpgm")
        for b in self.ool: e(b)

    def build(self):
        self.entry(); self.helper(); self.compute()
        self.e("L_end:\ns_endpgm")
        lines, added = insert_nops(self.e.L)
        hdr = open("cdna_kernels/" + NAME + ".s.ref").read().split("\n")
        top = [l for l in hdr if l.startswith(";") and "@launch" not in l]
        out = "\n".join(top) + f"\n; @launch grid=(256,1,1) block=(512,1,1) lds={LDS_BYTES}\n"
        if self.c.pts: out += "; PTS " + " ".join(self.ptorder) + "\n"
        out += f""".amdgcn_target "amdgcn-amd-amdhsa--gfx950"
.text
.globl {NAME}_kernel
.p2align 8
.type {NAME}_kernel,@function
{NAME}_kernel:
"""
        out += "\n".join((l if l.endswith(":") else "    " + l) for l in lines)
        out += f"""
.section .rodata,"a"
.p2align 6
.amdhsa_kernel {NAME}_kernel
  .amdhsa_next_free_vgpr 256
  .amdhsa_next_free_sgpr 102
  .amdhsa_accum_offset 256
  .amdhsa_group_segment_fixed_size 0
  .amdhsa_kernarg_size 104
  .amdhsa_user_sgpr_count 2
  .amdhsa_user_sgpr_kernarg_segment_ptr 1
  .amdhsa_system_sgpr_workgroup_id_x 1
.end_amdhsa_kernel
"""
        return out, added

def make(path, **kw):
    cfg = Cfg()
    for k, v in kw.items():
        assert hasattr(cfg, k), k
        setattr(cfg, k, v)
    txt, added = G(cfg).build()
    open(path, "w").write(txt)
    return added

if __name__ == "__main__":
    print("nops added", make("cdna_kernels/" + NAME + ".s"))
```

```python
import sys, copy
from asmlib import E, insert_nops

NAME = "concat_heads__mha_block_cached__mha_block_cached__near_ridge"

class Cfg:
    pol_x = ""; pol_wq = ""; pol_k = "nt"; pol_v = ""; pol_wo = ""; pol_wot = ""
    bursts = [4, 8, 12, 16]
    nstag = 2; sstep = 2
    t_split = 3; t0_at = 10; t_lead = 3; t1_at = 20
    wo0_at = 14
    pl_at = [8, 25, 43]
    nstart = 4
    fin = 'light'
    hsleep = 1
    dist = 6
    pc_at = [14, 30, 48]
    free_ds = 16
    wo1_at = 18; v1a_ord = 0.5; late = (1, 2, 3, 4, 5, 6, 7); chk = 0
    t_ord = 0.5
    pol_x1 = ''; pol_wq1 = ''; nfirst = 6; pol_v1 = ''
    padfrom = None
    t_main = True
    npre = 4
    safebar = 3
    free_pos = 4
    early = 2
    v_ord = 1
    sched = None
    x_nounit0 = False; x_noninth = False
    lp_unit = 2; lp_depth = 1; lp_sleep = 0
    noout = 0
    pol_out = ''
    wo2_at = 20
    tail_at = 42
    codepf = True
    freerun = False
    diag = False; pts = None; dbgout = None; clk = False; fine = False; nodma = False
    ws_o = 0; ws_p = 16 << 20; ws_f = 32 << 20; ws_e = 40 << 20; ws_t = 41 << 20; ws_s = 48 << 20

KB = 1024
WS_ = [0, 32*KB, 80*KB, 48*KB, 64*KB, 112*KB]
XS_ = [16*KB, 96*KB, 128*KB]
FULLA, FREEA, FREEB = 144*KB, 145*KB, 146*KB
KR, KR1, VR = 80*KB, 48*KB, 112*KB
WOS = [0, 32*KB, 64*KB]
W9 = 147*KB
VH = [96*KB, 112*KB, 128*KB]
def vslot(hd, half): return VH[(2*hd + half + 1) % 3]
LDS_BYTES = 163840
HORD = [(0, 0), (0, 1), (1, 0), (1, 1), (2, 0), (2, 1), (3, 0), (3, 1)]
NTO = [8, 4, 5, 6, 7, 0, 1, 2, 3]

sW, sBLK, sKG, sBG, sHP, sWL, sB = 4, 5, 6, 7, 8, 9, 10
pX, pK, pV, pWQ, pWO, pOUT, pDBG, pWS = 44, 46, 48, 50, 52, 36, 38, 40
R0, R1, R2, R3, R4, R5 = 56, 60, 64, 68, 72, 96
sT0, sT1, sT2 = 3, 11, 12
sSTG, sE, sXO, sFV = 13, 14, 15, 15
RT, sFM, sHV = 20, 24, 25
sH = 76
sKB, sVB, sC, sSPIN, sOWN, sSND, sU, sRHO = 84, 85, 86, 87, 88, 89, 93, 94
sTAG, sM0, sM1 = 53, 48, 50

def srd(e, R, ptr, off, records):
    if off is None: e(f"s_mov_b32 s{R}, s{ptr}\ns_mov_b32 s{R+1}, s{ptr+1}")
    else: e(f"s_add_u32 s{R}, s{ptr}, s{off}\ns_addc_u32 s{R+1}, s{ptr+1}, 0")
    e(f"s_mov_b32 s{R+2}, {records}\ns_mov_b32 s{R+3}, 0x00020000")
def S(R): return f"s[{R}:{R+3}]"
def vr(a, n=4): return f"v[{a}:{a+n-1}]" if n > 1 else f"v{a}"
MF = "v_mfma_f32_16x16x32_bf16"

class G:
    def __init__(self, cfg):
        if cfg.sched: cfg.nstag = len(cfg.sched); cfg.sstep = 1; cfg.bursts = []
        self.c = cfg; self.e = E(); self.ool = []; self.uid = 0; self.ptorder = []
    def U(self):
        self.uid += 1; return self.uid
    def clock(self): return f"s_mem{'' if self.c.clk else 'real'}time s[100:101]"
    def pt(self, label):
        if self.c.padfrom == label: self.e("s_memrealtime s[54:55]")
        if not self.c.pts or label not in self.c.pts: return
        k = len(self.ptorder); self.ptorder.append(label); assert k < 20
        if k: self.e(f"s_mov_b32 s{16 + k - 1}, s100")
        self.e(self.clock())
    def lane_stamp(self, k):
        if self.c.diag and (self.c.fine or k == 63):
            self.e(f"{self.clock()}\ns_waitcnt lgkmcnt(0)\nv_writelane_b32 v30, s100, {k}")
    def dump(self, helper):
        e = self.e; c = self.c
        if not c.diag: return
        e("s_waitcnt vmcnt(0) lgkmcnt(0)")
        if helper:
            if c.dbgout is not None: return
            e(f"s_lshl_b32 s{sT0}, s2, 3\ns_add_u32 s{sT0}, s{sT0}, s{sW}\ns_lshl_b32 s{sT0}, s{sT0}, 8\ns_add_u32 s{sT0}, s{sT0}, {c.ws_s + (1 << 20)}")
            srd(e, R0, pWS, sT0, 256)
            e(f"v_lshlrev_b32 v26, 2, v1\nbuffer_store_dword v30, v26, {S(R0)}, 0 offen\ns_waitcnt vmcnt(0)")
            return
        n = len(self.ptorder)
        e(f"s_mov_b32 s{16 + n - 1}, s100")
        if c.dbgout is not None:
            e(f"s_cmp_eq_u32 s2, {c.dbgout}\ns_cbranch_scc0 L_nodbg\ns_cmp_eq_u32 s{sW}, 0\ns_cbranch_scc0 L_nodbg")
            srd(e, R0, pDBG, None, 256)
            for k in range(n):
                e(f"s_sub_u32 s{sT0}, s{16 + k}, s16\nv_mov_b32 v110, s{sT0}\nbuffer_store_dword v110, off, {S(R0)}, 0 offset:{4*k}")
            e("s_waitcnt vmcnt(0)\nL_nodbg:")
            return
        e(f"s_lshl_b32 s{sT0}, s2, 3\ns_add_u32 s{sT0}, s{sT0}, s{sW}\ns_lshl_b32 s{sT0}, s{sT0}, 7\ns_add_u32 s{sT0}, s{sT0}, {c.ws_s}")
        srd(e, R0, pWS, sT0, 128)
        for k in range(n):
            e(f"v_mov_b32 v110, s{16 + k}\nbuffer_store_dword v110, off, {S(R0)}, 0 offset:{4*k}")
        e("s_waitcnt vmcnt(0)")

    def entry(self):
        self.pt("entry")
        self.e(f"""
        s_cmp_ge_u32 s2, 256
        s_cbranch_scc1 L_end
        s_load_dwordx16 s[16:31], s[0:1], 0
        s_load_dwordx8 s[32:39], s[0:1], 64
        s_load_dwordx2 s[40:41], s[0:1], 96
        v_lshrrev_b32 v2, 6, v0
        v_and_b32 v1, 63, v0
        v_readfirstlane_b32 s{sW}, v2
        s_and_b32 s{sT0}, s2, 7
        s_lshr_b32 s{sBLK}, s{sT0}, 2
        s_and_b32 s{sKG}, s2, 3
        s_lshr_b32 s{sBG}, s2, 5
        s_bfe_u32 s{sHP}, s2, 0x20003
        s_and_b32 s{sWL}, s{sW}, 3
        s_lshl_b32 s{sB}, s{sBG}, 2
        s_add_u32 s{sB}, s{sB}, s{sWL}
        s_cmp_lt_u32 s{sW}, 4
        s_cbranch_scc1 L_compute
        """)

    def vm(self, txt, tag=None):
        self.e.vmem(txt if not self.c.nodma else "s_nop 0", tag)
    def dma4(self, R, voffs, m0, soff, pol, tag, pre=None):
        e = self.e
        e(f"s_add_u32 m0, s{m0[0]}, {m0[1]}")
        if pre: e(pre)
        for j in range(4):
            self.vm(f"buffer_load_dwordx4 v{voffs[j]}, {S(R)}, s{soff} offen offset:{j*1024} {pol} lds", tag)
    def hs(self, j):
        c = self.c
        if j % 2 == 0:
            pre = f"s_mov_b32 s{sXO}, 0\ns_mov_b32 s{sSTG}, 0" if j == 0 else \
                  f"s_add_u32 s{sRHO}, s{sRHO}, 1\ns_lshl_b32 s{sXO}, s{sRHO}, 7\ns_lshl_b32 s{sSTG}, s{sRHO}, 19\ns_and_b32 s{sRHO}, s{sRHO}, 7"
            if c.nstart == 3:
                pre = f"s_lshl_b32 s{sXO}, s{sRHO}, 7\ns_lshl_b32 s{sSTG}, s{sRHO}, 19"
                if j: pre = f"s_add_u32 s{sRHO}, s{sRHO}, 1\ns_cmp_eq_u32 s{sRHO}, 9\ns_cselect_b32 s{sRHO}, 0, s{sRHO}\n" + pre
            self.dma4(R5, [160, 161, 162, 163], (sOWN, XS_[(j >> 1) % 3]), sXO, c.pol_x1 if j < c.nfirst else c.pol_x, None, pre)
            self.dma4(R0, [4, 5, 6, 7], (sOWN, WS_[j % 6]), sSTG, c.pol_wq1 if j < c.nfirst else c.pol_wq, None)
        else:
            self.dma4(R0, [4, 5, 6, 7], (sOWN, WS_[j % 6]), sSTG, c.pol_wq1 if j < c.nfirst else c.pol_wq, None, f"s_add_u32 s{sSTG}, s{sSTG}, 262144")
    def sflag(self, val):
        self.e(f"s_mov_b32 m0, s{sFM}\ns_mov_b32 s{sT1}, {4*val}")
        self.e.vmem(f"buffer_load_dword off, {S(RT)}, s{sT1} lds", f"sf{val}")
    def publish(self, val):
        self.e.wait(vm="sf18")
        self.e(f"s_waitcnt lgkmcnt(0)\nv_mov_b32 v28, {val}\nds_max_u32 v27, v28")
        self.lane_stamp(val)
    def kv_burst(self, g):
        e = self.e; c = self.c
        for a in range(2):
            if g < 2: e(f"s_mov_b32 s{sU}, {g*8192 + a*4096}")
            else: e(f"s_add_u32 s{sU}, s{sHV + g - 2}, {a*128}")
            for j in range(4):
                self.vm(f"buffer_load_dwordx4 {vr(32 + 32*g + 16*a + 4*j)}, v{(8 if g < 2 else 164) + j}, {S(R1 if g < 2 else R2)}, s{sU} offen offset:{j*1024} {c.pol_k if g < 2 else c.pol_v1}", f"kv{g}")
    def k_write(self, g):
        self.e.wait(vm=f"kv{g}")
        for p in range(8): self.e(f"ds_write_b128 v19, {vr(32 + 32*g + 4*p)} offset:{g*(VR - KR) + p*1024}")
    def v_write(self, hd, half):
        self.e.wait(vm=f"kv{2 + hd}")
        for p in range(4): self.e(f"ds_write_b128 v18, {vr(96 + 32*hd + 16*half + 4*p)} offset:{vslot(hd, half) - VH[0] + p*1024}")
    def wo(self, hd):
        c = self.c; slot = WOS[hd % 3]
        self.lane_stamp(50 + hd)
        self.dma4(R3, [13, 14, 15, 16], (sKB, slot), sH + hd, c.pol_wo, f"wo{hd}")
        self.dma4(R3, [13, 14, 15, 16], (sKB, slot + 4096), sT1, c.pol_wo, f"wo{hd}", f"s_add_u32 s{sT1}, s{sH + hd}, 18432")
        self.e(f"s_add_u32 m0, s{sVB}, {W9 + 4096*(hd % 3)}")
        if c.x_noninth:
            if hd < 2:
                for k in range(4): self.vm(f"buffer_load_dwordx4 v13, {S(R3)}, s{sH + hd} offen {c.pol_wo} lds", f"wo{hd}")
        else: self.vm(f"buffer_load_dwordx4 v17, {S(R3)}, s{sH + hd} offen {c.pol_wo} lds", f"wo{hd}")
    def vdma(self, hd, half):
        self.dma4(R2, [164, 165, 166, 167], (sOWN, vslot(hd, half)), sT1, self.c.pol_v, None, f"s_add_u32 s{sT1}, s{sHV + hd}, {128*half}")
    def touch(self, hds):
        if not hds: return
        u = self.U()
        self.e(f"s_cmp_eq_u32 s{sW}, 7\ns_cbranch_scc0 L_nt{u}")
        for hd in hds:
            self.e(f"buffer_load_dword v24, v{25 if hd < 2 or not self.c.t_main else 31}, {S(R4)}, s{sH+hd} offen {self.c.pol_wot}" if not self.c.nodma else "s_nop 0")
        self.e(f"L_nt{u}:")
    def fsrc(self, thr):
        return "ds_read_b32 v29, v26" + (f" offset:{FREEB - FREEA}" if self.c.free_ds <= thr <= 20 else "")
    def need_free(self, thr):
        e = self.e
        if thr <= self.known_free: return
        self.known_free = thr
        if thr >= 21:
            assert not self.polled
            e("s_barrier"); return
        if self.c.freerun and thr < 16:
            self.polled = False; return
        u = self.U()
        if not self.polled: e(self.fsrc(thr))
        self.polled = False
        e(f"s_waitcnt lgkmcnt(0)\nv_cmp_gt_u32 vcc, {thr}, v29\ns_cbranch_vccnz L_fs{u}\nL_fo{u}:")
        self.hool.append(f"""
        L_fs{u}:
        s_mov_b32 s{sSPIN}, 0
        L_fl{u}:
        s_sleep {self.c.hsleep}
        {self.fsrc(thr)}
        s_add_u32 s{sSPIN}, s{sSPIN}, 1
        s_cmp_lt_u32 s{sSPIN}, 0x100000
        s_waitcnt lgkmcnt(0)
        s_cbranch_scc0 L_fo{u}
        v_cmp_gt_u32 vcc, {thr}, v29
        s_cbranch_vccnz L_fl{u}
        s_branch L_fo{u}
        """)
    def helper_body(self, off):
        e = self.e; c = self.c
        self.known_free = 0; self.polled = False; self.hool = []
        it = []
        for j in range(c.npre, 18): it.append((max(0, j - 5 + (1 - (j & 1))), 0, 'hs', j))
        sc = c.sched[off] if c.sched else None
        if sc: off = 0
        for g in range(4): it.append((sc[g] if sc else c.bursts[g] + (off if c.bursts[g] < 15 else 0), 1 if g < 2 else c.v_ord, 'kv', g))
        if c.t0_at is not None:
            it.append((sc[4] if sc else c.t0_at + (off if c.t0_at < 14 else 0), 2, 'touch', list(range(c.t_split))))
            if c.t1_at is None:
                for hd in range(c.t_split, 8): it.append((max(21, 20 + hd - c.t_lead), c.t_ord, 'touch', [hd]))
            else: it.append((c.t1_at + (off if c.t1_at < 14 else 0), 5, 'touch', list(range(c.t_split, 8))))
        it.append((max(14, c.wo0_at), 3, 'wo', 0))
        it += [(16, 0, 'kw', 0), (18, 0, 'kw', 1), (20, 0, 'vw', 0), (max(16, c.wo1_at), 3, 'wo', 1), (20, 1, 'wo', 2), (20, c.v1a_ord, 'v1a', 0), (21, 0, 'vw', 1)]
        for hd in range(2, 8):
            it.append((19 + hd, 0.7, 'va', hd))
            it.append((20 + hd, 0, 'v', hd))
            if hd + 1 < 8: it.append((20 + hd, 1, 'wo', hd + 1))
        it.sort(key=lambda t: (t[0], t[1]))
        late21 = False
        for n, (thr, _, kind, arg) in enumerate(it):
            self.need_free(thr)
            nxt = it[n + 1][0] if n + 1 < len(it) else 0
            if 21 > nxt > self.known_free and kind in ('hs', 'wo'):
                e(self.fsrc(nxt)); self.polled = True
            if kind == 'hs':
                self.hs(arg); self.sflag(arg + 1)
                if c.fine and c.freerun and arg in (3, 5, 9, 13, 17): e('s_waitcnt vmcnt(0)'); self.lane_stamp(32 + arg // 4)
            elif kind == 'kv': self.kv_burst(arg)
            elif kind == 'touch': self.touch(arg)
            elif kind == 'kw': self.k_write(arg); self.publish(19 + arg)
            elif kind == 'v1a': self.v_write(1, 0)
            elif kind == 'vw':
                if arg == 0: self.v_write(0, 0)
                self.v_write(arg, 1)
                e.wait(vm=f"wo{arg}"); self.publish(21 + 2*arg)
                if arg == 1 and 2 in c.late: self.sflag(24)
            elif kind == 'wo':
                self.wo(arg)
                if arg >= 3 and arg in c.late: self.sflag(20 + 2*arg)
            elif kind == 'va': self.vdma(arg, 0)
            elif kind == 'v':
                assert f"wo{arg}" in e.vm.tags
                self.vdma(arg, 1); self.sflag(21 + 2*arg)
        self.lane_stamp(63)
        self.dump(True)
        e("s_endpgm")
        for b in self.hool: e(b)
    def head_offsets(self, bases):
        for hd, (a, r) in enumerate(HORD):
            if r == 0: self.e(f"s_add_u32 s{sT0}, s{sHP}, {a}\ns_and_b32 s{sT0}, s{sT0}, 3\ns_lshl_b32 s{sT0}, s{sT0}, 1")
            else: self.e(f"s_add_u32 s{sT0}, s{sT0}, 1")
            for base, mul in bases: self.e(f"s_mul_i32 s{base + hd}, s{sT0}, {mul}")
    def helper(self):
        e = self.e; c = self.c
        e.vm.__init__('vmcnt', 63)
        e(f"""
        v_lshrrev_b32 v20, 3, v1
        v_mul_u32_u24 v20, 1152, v20
        v_and_b32 v21, 7, v1
        v_lshrrev_b32 v22, 4, v1
        v_xor_b32 v21, v21, v22
        v_lshlrev_b32 v21, 4, v21
        v_add_u32 v160, v20, v21
        v_xor_b32 v21, 64, v21
        v_add_u32 v161, v20, v21
        v_add_u32 v162, 16384, v160
        v_add_u32 v163, 24576, v161
        v_add_u32 v161, 8192, v161
        v_bfe_u32 v23, v1, 2, 2
        v_lshlrev_b32 v21, 6, v22
        v_lshl_add_u32 v20, v23, 13, v21
        v_and_b32 v21, 3, v1
        v_lshl_add_u32 v4, v21, 4, v20
        v_add_u32 v5, 31744, v4
        v_xor_b32 v7, 32, v4
        v_add_u32 v6, 63488, v7
        v_add_u32 v7, 95232, v7
        v_lshlrev_b32 v20, 2, v1
        s_lshl_b32 s{sRHO}, s{sHP}, {1 if c.nstart == 8 else 0}
        s_add_u32 s{sRHO}, s{sRHO}, s{sBG}
        {f"s_and_b32 s{sRHO}, s{sRHO}, {c.nstart - 1}" if c.nstart != 3 else f"s_mul_i32 s{sT0}, s{sRHO}, 11"}
        {f"s_mul_i32 s{sRHO}, s{sRHO}, {8 // c.nstart}" if c.nstart != 3 else f"s_lshr_b32 s{sT0}, s{sT0}, 5"}
        {"" if c.nstart != 3 else f"s_mul_i32 s{sT0}, s{sT0}, 3"}
        {"" if c.nstart != 3 else f"s_sub_u32 s{sRHO}, s{sRHO}, s{sT0}"}
        {"" if c.nstart != 3 else f"s_mul_i32 s{sRHO}, s{sRHO}, 3"}
        s_lshr_b32 s{sT2}, s{sWL}, 1
        s_lshl_b32 s{sT0}, s{sKG}, 3
        s_lshl_b32 s{sT1}, s{sHP}, 1
        s_add_u32 s{sT0}, s{sT0}, s{sT1}
        s_add_u32 s{sT0}, s{sT0}, s{sT2}
        s_lshl_b32 s{sT0}, s{sT0}, 8
        s_and_b32 s{sT1}, s{sWL}, 1
        s_lshl_b32 s{sT1}, s{sT1}, 17
        s_add_u32 s{sT0}, s{sT0}, s{sT1}
        s_sub_u32 s{R0+2}, 4718592, s{sT0}
        s_mov_b32 s{R0+3}, 0x00020000
        s_mul_i32 s{sT1}, s{sB}, 36864
        s_mov_b32 s{R5+2}, 36864
        s_mov_b32 s{R5+3}, 0x00020000
        s_lshl_b32 s{sT2}, s2, 8
        s_add_u32 s{sT2}, s{sT2}, {c.ws_t}
        s_lshl_b32 s{sOWN}, s{sWL}, 12
        s_cmp_eq_u32 s{sBLK}, 0
        s_waitcnt lgkmcnt(0)
        s_cselect_b64 s[{pX}:{pX+1}], s[16:17], s[26:27]
        s_cselect_b64 s[{pWQ}:{pWQ+1}], s[22:23], s[32:33]
        s_cselect_b64 s[{pK}:{pK+1}], s[18:19], s[28:29]
        s_cselect_b64 s[{pV}:{pV+1}], s[20:21], s[30:31]
        s_cselect_b64 s[{pWO}:{pWO+1}], s[24:25], s[34:35]
        s_add_u32 s{R5}, s{pX}, s{sT1}
        s_addc_u32 s{R5+1}, s{pX+1}, 0
        s_add_u32 s{R0}, s{pWQ}, s{sT0}
        s_addc_u32 s{R0+1}, s{pWQ+1}, 0
        """)
        srd(e, RT, pWS, sT2, 256)
        e.vmem(f"buffer_store_dword v1, v20, {S(RT)}, 0 offen sc1", 'tab')
        self.hs(0)
        e(f"""
        v_mul_u32_u24 v26, 260, v21
        v_add_u32 v26, {FREEA}, v26
        s_lshl_b32 s{sFM}, s{sWL}, 8
        s_add_u32 s{sFM}, s{sFM}, {FULLA}
        v_lshl_add_u32 v27, v1, 2, s{sFM}
        """)
        e("s_barrier")
        e.wait(vm='tab')
        self.sflag(1)
        for j in range(1, c.npre): self.hs(j); self.sflag(j + 1)
        e(f"""
        s_lshl_b32 s{sT0}, s{sB}, 5
        s_lshl_b32 s{sT1}, s{sKG}, 3
        s_add_u32 s{sT0}, s{sT0}, s{sT1}
        s_lshl_b32 s{sT2}, s{sT0}, 13
        """)
        srd(e, R2, pV, sT2, 65536)
        e(f"s_lshl_b32 s{sT1}, s{sHP}, 14\ns_add_u32 s{sT2}, s{sT2}, s{sT1}")
        srd(e, R1, pK, sT2, 16384)
        e(f"""
        v_and_b32 v20, 15, v1
        v_xor_b32 v20, v20, v22
        v_lshlrev_b32 v20, 4, v20
        v_lshl_add_u32 v8, v22, 8, v20
        v_xor_b32 v9, 64, v8
        v_xor_b32 v10, 0x80, v8
        v_xor_b32 v11, 0xc0, v8
        s_lshl_b32 s{sKB}, s{sWL}, 13
        s_lshl_b32 s{sVB}, s{sWL}, 10
        s_add_u32 s{sT0}, s{sKB}, {KR}
        v_lshl_add_u32 v19, v1, 4, s{sT0}
        s_add_u32 s{sT0}, s{sOWN}, {VH[0]}
        v_lshl_add_u32 v18, v1, 4, s{sT0}
        v_lshrrev_b32 v20, 3, v1
        v_and_b32 v164, 7, v1
        v_xor_b32 v164, v164, v22
        v_lshlrev_b32 v164, 4, v164
        v_lshl_add_u32 v164, v20, 8, v164
        v_xor_b32 v165, 64, v164
        v_add_u32 v166, 2048, v164
        v_add_u32 v167, 3072, v165
        v_add_u32 v165, 1024, v165
        s_mul_i32 s{sT0}, s{sKG}, 1179648
        """)
        srd(e, R4, pWO, sT0, 1179648)
        e(f"""
        s_mul_i32 s{sT1}, s{sWL}, 36864
        s_add_u32 s{sT0}, s{sT0}, s{sT1}
        s_lshl_b32 s{sT1}, s{sHP}, 8
        s_add_u32 s{sT0}, s{sT0}, s{sT1}
        s_sub_u32 s{sT2}, 4718592, s{sT0}
        """)
        srd(e, R3, pWO, sT0, f"s{sT2}")
        e(f"""
        s_and_b32 s{sT0}, s{sKG}, 2
        v_xor_b32 v20, s{sT0}, v22
        v_mul_u32_u24 v23, 1152, v23
        v_lshl_add_u32 v23, v20, 6, v23
        v_lshl_add_u32 v13, v21, 4, v23
        v_add_u32 v14, 3584, v13
        v_xor_b32 v16, 32, v13
        v_add_u32 v15, 7168, v16
        v_add_u32 v16, 10752, v16
        v_bfe_u32 v20, v1, 1, 2
        v_bfe_u32 v21, v1, 3, 1
        v_lshl_add_u32 v20, v21, 3, v20
        v_bfe_u32 v21, v1, 4, 1
        v_lshl_add_u32 v20, v21, 2, v20
        v_bfe_u32 v22, v1, 5, 1
        v_lshl_add_u32 v20, v22, 4, v20
        v_mul_u32_u24 v20, 1152, v20
        v_and_b32 v22, 1, v1
        v_lshl_add_u32 v20, v22, 4, v20
        s_mul_i32 s{sT0}, s{sHP}, 224
        s_sub_u32 s{sT0}, 1024, s{sT0}
        v_add_u32 v17, s{sT0}, v20
        s_lshl_b32 s{sT0}, s{sBG}, 4
        v_and_b32 v20, 15, v1
        v_add_u32 v20, s{sT0}, v20
        v_mul_u32_u24 v20, 1152, v20
        v_lshl_add_u32 v21, v21, 7, s{sT1}
        v_add_u32 v31, v20, v21
        v_mov_b32 v22, 1024
        v_cmp_gt_u32 vcc, 32, v1
        v_cndmask_b32 v21, v22, v21, vcc
        v_add_u32 v25, v20, v21
        """)
        self.head_offsets([(sH, 147456), (sHV, 8192)])
        if c.nstag > 1:
            e(f"s_and_b32 s{sT0}, s{sBG}, {c.nstag - 1}")
            for o in range(1, c.nstag): e(f"s_cmp_eq_u32 s{sT0}, {o}\ns_cbranch_scc1 L_hv{o}")
        saved = copy.deepcopy(e.vm)
        for o in range(c.nstag):
            e.vm = copy.deepcopy(saved)
            if o: e(f"L_hv{o}:")
            self.helper_body(o * c.sstep)

    def compute(self):
        e = self.e; c = self.c
        e.vm.__init__('vmcnt', 63); e.lg.__init__('lgkmcnt', 15)
        ACC, FA, FB, D = 32, 160, 192, c.dist
        e("L_compute:")
        e(f"""
        v_lshlrev_b32 v2, 2, v0
        v_add_u32 v2, {FULLA}, v2
        v_mov_b32 v3, 0
        ds_write_b32 v2, v3
        ds_write_b32 v2, v3 offset:{FREEA - FULLA}
        ds_write_b32 v2, v3 offset:{FREEB - FULLA}
        s_waitcnt lgkmcnt(0)
        """)
        self.pt('ka')
        e("s_barrier")
        self.pt('lc')
        e(f"s_lshl_b32 s{sT0}, s2, 8\ns_add_u32 s{sT0}, s{sT0}, {c.ws_t}")
        srd(e, R5, pWS, sT0, 256)
        e(f"v_and_b32 v16, 31, v1\nv_lshlrev_b32 v13, 2, v16")
        e(f"""
        s_lshl_b32 s{sT0}, s{sBLK}, 5
        s_add_u32 s{sT2}, s{sT0}, s{sB}
        s_lshl_b32 s{sT0}, s{sT2}, 7
        s_add_u32 s{sT0}, s{sT0}, {c.ws_e}
        """)
        srd(e, R2, pWS, sT0, 128)
        if c.codepf:
            e(f"""
            s_getpc_b64 s[90:91]
            L_pc:
            s_lshr_b32 s{sT0}, s2, 3
            s_lshl_b32 s{sT0}, s{sT0}, 2
            s_add_u32 s{sT0}, s{sT0}, s{sWL}
            s_lshl_b32 s{sT0}, s{sT0}, 9
            v_and_b32 v17, 3, v1
            v_lshl_add_u32 v17, v17, 7, s{sT0}
            v_min_u32 v17, L_end - {NAME}_kernel, v17
            s_sub_u32 s90, s90, L_pc - {NAME}_kernel
            s_subb_u32 s91, s91, 0
            v_mov_b32 v19, s91
            v_add_co_u32 v18, vcc, s90, v17
            v_addc_co_u32 v19, vcc, 0, v19, vcc
            """)
            e.vmem("global_load_dword v28, v[18:19], off", 'code')
        e.vmem(f"buffer_load_dword v14, off, {S(R2)}, 0 sc1", 'epoch')
        e(f"""
        v_and_b32 v21, 3, v1
        v_mul_u32_u24 v22, 260, v21
        v_add_u32 v22, {FULLA}, v22
        s_lshl_b32 s{sT0}, s{sWL}, 8
        s_add_u32 s{sT0}, s{sT0}, {FREEA}
        v_lshl_add_u32 v23, v1, 2, s{sT0}
        s_mov_b32 m0, s{sT0}
        v_add_u32 v23, {FREEB - FREEA}, v23

        s_lshl_b32 s{sOWN}, s{sKG}, 2
        s_add_u32 s{sOWN}, s{sOWN}, s{sHP}
        s_lshl_b32 s{sOWN}, s{sOWN}, 7
        s_lshl_b32 s{sT0}, s{sT2}, 17
        s_lshl_b32 s{sT1}, s{sKG}, 15
        s_add_u32 s{sT0}, s{sT0}, s{sT1}
        s_add_u32 s{sT0}, s{sT0}, {c.ws_o}
        """)
        srd(e, R0, pWS, sT0, 32768)
        e(f"""
        s_lshl_b32 s{sT0}, s{sT2}, 2
        s_add_u32 s{sT0}, s{sT0}, s{sHP}
        s_lshl_b32 s{sT0}, s{sT0}, 16
        s_add_u32 s{sT0}, s{sT0}, {c.ws_p}
        """)
        srd(e, R3, pWS, sT0, 65536)
        e(f"""
        s_mul_i32 s{sT0}, s{sB}, 73728
        s_mul_i32 s{sT1}, s{sBLK}, 1152
        s_add_u32 s{sT0}, s{sT0}, s{sT1}
        s_sub_u32 s{sT1}, 2359296, s{sT0}
        """)
        srd(e, R4, pOUT, sT0, f"s{sT1}")
        e(f"""
        v_lshrrev_b32 v17, 4, v1
        v_and_b32 v18, 15, v1
        v_bfe_u32 v19, v1, 2, 2
        v_lshlrev_b32 v19, 6, v19
        v_and_b32 v20, 1, v17
        v_lshl_add_u32 v19, v20, 5, v19
        v_lshl_add_u32 v19, v21, 3, v19
        v_lshl_add_u32 v2, v17, 11, v19
        v_lshrrev_b32 v19, 5, v1
        v_lshlrev_b32 v19, 9, v19
        v_lshl_add_u32 v3, v16, 3, v19
        v_lshrrev_b32 v19, 1, v18
        v_xor_b32 v19, v19, v17
        v_lshlrev_b32 v19, 4, v19
        v_lshl_add_u32 v19, v18, 7, v19
        s_lshl_b32 s{sT0}, s{sWL}, 12
        v_add_u32 v6, s{sT0}, v19
        v_lshrrev_b32 v19, 1, v17
        v_xor_b32 v19, v19, v18
        v_lshlrev_b32 v19, 4, v19
        v_lshl_add_u32 v19, v18, 8, v19
        v_lshl_add_u32 v19, v20, 3, v19
        s_lshl_b32 s{sT0}, s{sWL}, 13
        s_add_u32 s{sKB}, s{sT0}, {KR}
        s_add_u32 s{sVB}, s{sT0}, {VR}
        v_add_u32 v9, s{sKB}, v19
        v_add_u32 v12, {VH[0]}, v6
        v_lshlrev_b32 v10, 4, v1
        v_lshlrev_b32 v11, 2, v1
        v_add_u32 v11, 4096, v11
        s_mov_b32 s{sC}, 0x3e0293ee
        """)
        for a in range(4): e(f"s_add_u32 s{sT0}, s{sHP}, {a}\ns_and_b32 s{sT0}, s{sT0}, 3\ns_lshl_b32 s{sH + a}, s{sT0}, 13")

        def fread(): e.ds("ds_read_b32 v21, v22", "full")
        def fcmp(val): e.wait(lg="full"); e(f"v_cmp_gt_u32 vcc, {val}, v21")
        def fbranch(val):
            if c.freerun and 1 < val <= 18: return
            u = self.U()
            e(f"s_cbranch_vccnz L_cs{u}\nL_co{u}:")
            self.ool.append(f"""
            L_cs{u}:
            s_mov_b32 s{sSPIN}, 0
            L_cl{u}:
            ds_read_b32 v21, v22
            s_add_u32 s{sSPIN}, s{sSPIN}, 1
            s_cmp_lt_u32 s{sSPIN}, 0x100000
            s_waitcnt lgkmcnt(0)
            s_cbranch_scc0 L_co{u}
            v_cmp_gt_u32 vcc, {val}, v21
            s_cbranch_vccnz L_cl{u}
            s_branch L_co{u}
            """)
        def fcheck(val): fcmp(val); fbranch(val)
        def ffree(val): e(f"v_mov_b32 v20, {val}"); e.ds("ds_write_b32 v23, v20")
        FREE_DMA = ("v", f"buffer_load_dword off, {S(R5)}, s{sFV} lds", None)
        def emit_op(op):
            if op[0] == 's': e(op[1])
            elif op[0] == 'v': e.vmem(op[1], op[2])
            elif op[0] == 'd': e.ds(op[1], op[2])
            else: op[1]()
        fixed = {}
        def fx(pos, op):
            assert pos not in fixed, pos
            fixed[pos] = [op] if op else []

        def qread(g, jj):
            j, a = g >> 4, g & 15
            base = WS_[j % 6]; hi = base >= 64*KB
            e.ds(f"ds_read_b64_tr_b16 {vr(FA + 4*(g & 7) + 2*jj, 2)}, v{(16 if hi else 4) + (a & 1)} offset:{base - hi*64*KB + (a >> 3)*8192 + jj*1024 + ((a & 7) >> 1)*256}", f"a{g}")
        def xread_op(j, rt):
            base = XS_[(j >> 1) % 3]; hi = base >= 96*KB
            return ("d", f"ds_read_b128 {vr(FB + 8*(j & 1) + 4*rt)}, v{[[7, 18], [24, 26]][rt][hi] + (j & 1)} offset:{base - hi*96*KB}", f"x{j}")
        e(f"""
        v_mov_b32 v4, v2
        v_xor_b32 v5, 32, v2
        v_add_u32 v16, {64*KB}, v4
        v_add_u32 v17, {64*KB}, v5
        s_and_b32 s{sT0}, s{sKG}, 1
        s_lshl_b32 s{sT0}, s{sT0}, 11
        v_xor_b32 v7, s{sT0}, v6
        v_xor_b32 v8, 64, v7
        v_add_u32 v18, {96*KB}, v7
        v_add_u32 v19, {96*KB}, v8
        v_xor_b32 v24, 0x800, v7
        v_xor_b32 v25, 0x800, v8
        v_xor_b32 v26, 0x800, v18
        v_xor_b32 v27, 0x800, v19
        """)
        fread(); fcheck(1)
        self.pt('hs0')
        emit_op(xread_op(0, 0)); emit_op(xread_op(0, 1))
        for g in range(D): qread(g, 0); qread(g, 1)
        offs = [o * c.sstep for o in range(c.nstag)]
        free_odd = {b + o for b in c.bursts + ([c.t0_at, c.t1_at or 0] if c.t0_at is not None else []) for o in offs} | {c.wo0_at} | ({x for r in c.sched for x in r} if c.sched else set())
        for p in range(1, 19):
            gB = 16*p - D
            if p >= c.free_ds:
                fx(2*(gB - 4), ("s", f"v_mov_b32 v20, {p}")); fx(2*(gB + 1), ("d", "ds_write_b32 v23, v20", None))
            elif p % 2 == 0 or p in free_odd:
                fx(2*(gB - 4), ("s", f"s_mov_b32 s{sFV}, {4*p}")); fx(2*(gB + c.free_pos), FREE_DMA)
            if p < 18:
                fx(2*(gB - 8), ("f", fread))
                fx(2*gB - 2, ("f", lambda p=p: fcmp(p + 1)))
                fx(2*gB, ("f", lambda p=p: (fbranch(p + 1), self.pt(f'hs{p}'))))
                fx(2*(gB + 2), xread_op(p, 0)); fx(2*(gB + 3), xread_op(p, 1))
        fx(41, ("f", lambda: (e.wait(vm='epoch'), e(f"v_readfirstlane_b32 s{sE}, v14"))))
        for g in range(288):
            j, a = g >> 4, g & 15
            for rt in range(2):
                if rt == 0 and a == 0: e.wait(lg=f"x{j}")
                if rt == 0 and g % 2 == 0: e.wait(lg=f"a{g + 1}")
                acc = vr(ACC + (2*a + rt)*4)
                e(f"{MF} {acc}, {vr(FA + 4*(g & 7))}, {vr(FB + 8*(j & 1) + 4*rt)}, {acc if j else 0}")
                for op in fixed.get(2*g + rt, []): emit_op(op)
                if g + D < 288: qread(g + D, rt)
        self.pt('qpend')
        QB = [32, 96]
        def qcvt(r, e=e):
            for s in range(4):
                for rt in range(2):
                    for u in range(2):
                        for q in range(2):
                            src = ACC + 64*r + 16*s + 8*u + 4*rt + 2*q
                            e(f"v_cvt_pk_bf16_f32 v{QB[r] + 8*s + 4*rt + 2*u + q}, v{src}, v{src+1}")
        SX, TM, PR, KF = [64, 128], [88, 152], 192, [FA, 208]
        fread()
        for k in range(8): e(f"v_xor_b32 v{24+k}, {32*k}, v9" if k else "v_mov_b32 v24, v9")
        qcvt(0)
        tail = f"""s_add_u32 s{sTAG}, s{sE}, 3
        s_lshl_b32 s{sT2}, s{sKG}, 12
        s_lshl_b32 s{sU}, s{sKG}, 14"""
        for Tp in range(1, 4):
            tail += f"""
        s_xor_b32 s{sT0}, s{sKG}, {Tp}
        s_lshl_b32 s{sT1}, s{sT0}, 14
        s_add_u32 s{sSND + Tp}, s{sT1}, s{sT2}
        s_lshl_b32 s{sT1}, s{sT0}, 12
        s_add_u32 s{sH + 4 + Tp}, s{sT1}, s{sU}"""
        tail += f"""
        s_mov_b32 s{sT2}, s{sU}
        s_bitcmp1_b32 s{sKG}, 1
        s_cselect_b64 s[{sM1}:{sM1+1}], -1, 0
        s_mov_b32 s{sM0}, 0x00ff00ff
        s_mov_b32 s{sM0+1}, 0x00ff00ff
        s_and_b32 s{sT0}, s{sKG}, 1
        s_mul_i32 s{sT0}, s{sT0}, 36864
        s_lshr_b32 s{sT1}, s{sKG}, 1
        s_lshl_b32 s{sU}, s{sT1}, 7
        s_add_u32 s{sU}, s{sU}, s{sT0}
        s_mul_i32 s{sT1}, s{sT1}, 18432
        s_add_u32 s{sT0}, s{sT0}, s{sT1}
        s_lshl_b32 s{sT1}, s{sHP}, 8
        s_add_u32 s{sU}, s{sU}, s{sT1}
        s_lshl_b32 s{sT1}, s{sHP}, 5
        s_add_u32 s{sT0}, s{sT0}, s{sT1}
        s_add_u32 s{sSND}, s{sT0}, 1024
        v_and_b32 v7, 15, v1
        v_mul_u32_u24 v7, 2304, v7
        v_bfe_u32 v8, v1, 4, 1
        v_lshl_add_u32 v7, v8, 5, v7
        v_lshrrev_b32 v8, 5, v1
        v_lshl_add_u32 v7, v8, 4, v7
        v_and_b32 v6, 7, v1
        v_mul_u32_u24 v6, 2304, v6
        v_lshrrev_b32 v8, 4, v1
        v_lshl_add_u32 v6, v8, 3, v6
        v_bfe_u32 v8, v1, 3, 1
        v_lshl_add_u32 v6, v8, 2, v6
        v_and_b32 v8, 3, v1
        v_min_u32 v8, 2, v8
        v_add_u32 v8, 1, v8
        v_xor_b32 v8, s{sKG}, v8
        v_lshlrev_b32 v8, 12, v8
        v_add_u32 v8, {c.lp_unit*1024 + 1020}, v8"""
        e(tail)
        fcheck(19)
        self.pt('Kok')
        def kreads(r):
            for s in range(4):
                for kt in range(2):
                    for hf in range(2):
                        e.ds(f"ds_read_b64 {vr(KF[r] + 8*s + 4*kt + 2*hf, 2)}, v{24 + 2*s + hf} offset:{(VR - KR)*r + kt*4096}", f"k{r}{s}{kt}")
        kreads(0)
        fread()
        C1 = []; qcvt(1, C1.append)
        def smfma(r):
            L = []
            for s in range(4):
                for kt in range(2):
                    for rt in range(2):
                        acc = vr(SX[r] + 8*kt + 4*rt)
                        L.append((f"k{r}{s}{kt}", f"{MF} {acc}, {vr(KF[r] + 8*s + 4*kt)}, {vr(QB[r] + 8*s + 4*rt)}, {acc if s else 0}"))
            return L
        def softmax(r):
            Sx, TMP = SX[r], TM[r]
            t0, t1, t2, t3 = TMP, TMP+1, TMP+2, TMP+3
            def val(rt, i): return Sx + 8*(i >> 2) + 4*rt + (i & 3)
            L = []
            for rt in range(2):
                t = TMP + 2*rt
                L += [f"v_max3_f32 v{t}, v{val(rt,0)}, v{val(rt,1)}, v{val(rt,2)}", f"v_max3_f32 v{t+1}, v{val(rt,3)}, v{val(rt,4)}, v{val(rt,5)}"]
            for rt in range(2): L.append(f"v_max3_f32 v{TMP + 2*rt}, v{TMP + 2*rt}, v{val(rt,6)}, v{val(rt,7)}")
            for rt in range(2): L.append(f"v_max_f32 v{TMP + 2*rt}, v{TMP + 2*rt}, v{TMP + 2*rt + 1}")
            xred = lambda op: [f"v_permlane32_swap_b32 v{t0}, v{t2}", f"{op} v{t0}, v{t0}, v{t2}", f"v_mov_b32 v{t1}, v{t0}",
                               f"v_permlane16_swap_b32 v{t0}, v{t1}", f"{op} v{t0}, v{t0}, v{t1}"]
            L += xred("v_max_f32")
            L += [f"v_mul_f32 v{t0}, s{sC}, v{t0}", f"v_mov_b32 v{t2}, v{t0}", f"v_permlane32_swap_b32 v{t0}, v{t2}"]
            for rt in range(2): L += [f"v_fma_f32 v{val(rt,i)}, v{val(rt,i)}, s{sC}, -v{TMP + 2*rt}" for i in range(8)]
            for rt in range(2): L += [f"v_exp_f32 v{val(rt,i)}, v{val(rt,i)}" for i in range(8)]
            for rt in range(2): L.append(f"v_pk_add_f32 {vr(TMP + 2*rt, 2)}, {vr(val(rt,0), 2)}, {vr(val(rt,2), 2)}")
            for k in (4, 6):
                for rt in range(2): L.append(f"v_pk_add_f32 {vr(TMP + 2*rt, 2)}, {vr(TMP + 2*rt, 2)}, {vr(val(rt,k), 2)}")
            L += [f"v_add_f32 v{t0}, v{t0}, v{t1}", f"v_add_f32 v{t2}, v{t2}, v{t3}"]
            L += xred("v_add_f32")
            L += [f"v_rcp_f32 v{t0}, v{t0}", f"v_mov_b32 v{t2}, v{t0}", f"v_permlane32_swap_b32 v{t0}, v{t2}"]
            for rt in range(2):
                L += [f"v_pk_mul_f32 {vr(val(rt,i), 2)}, {vr(val(rt,i), 2)}, {vr(TMP + 2*rt, 2)} op_sel_hi:[1,0]" for i in range(0, 8, 2)]
            for rt in range(2):
                L += [f"v_cvt_pk_bf16_f32 v{PR + 8*r + 4*rt + q}, v{val(rt,2*q)}, v{val(rt,2*q+1)}" for q in range(4)]
                L.append(f"buffer_store_dwordx4 {vr(PR + 8*r + 4*rt)}, v10, {S(R0)}, s{sH} offen offset:{(2*r + rt)*1024} sc1")
            return L
        def put(x): e.vmem(x, "pst") if x.startswith("buffer") else e(x)
        for n, (tag, m) in enumerate(smfma(0)):
            e.wait(lg=tag); e(m)
            e(C1.pop(0)); e(C1.pop(0))
            if n == 7:
                fcheck(20); self.pt('K1ok'); kreads(1); ffree(20)
        A, B = softmax(0), softmax(1)
        for n, (tag, m) in enumerate(smfma(1)):
            e.wait(lg=tag); e(m)
            if n >= 3: put(A.pop(0)); put(A.pop(0))
        fread()
        while A or B:
            if B: put(B.pop(0))
            if A: put(A.pop(0))
        def xorall(dst, base, init):
            ops = [f"v_bitop3_b32 v{dst}, v{base}, v{base + 1}, {init} bitop3:0x96"]
            ops += [f"v_bitop3_b32 v{dst}, v{base + 2*i}, v{base + 2*i + 1}, v{dst} bitop3:0x96" for i in range(1, 8)]
            return ops
        for x in xorall(15, PR, f"s{sTAG}"): e(x)
        e.vmem(f"buffer_store_dword v15, v11, {S(R0)}, s{sH} offen sc1")
        self.pt('sm')

        PT = [32, 48, 64, 80]; NA = 96; VF = 104; VWA = 136; VWB = 152
        def PA(nt, rt): return (NA + 4*rt) if nt == 8 else PT[2*(nt >> 2) + rt] + 4*(nt & 3)
        STEP = [(hd, nt) for hd in range(6) for nt in NTO]
        STEP += [(6, nt) for nt in NTO[:5]] + [(7, nt) for nt in NTO] + [(6, nt) for nt in NTO[5:]] if c.early else [(hd, nt) for hd in (6, 7) for nt in NTO]
        START = [[h for h, _ in STEP].index(hd) for hd in range(8)]
        VS = [VF if hd % 2 == 0 else 224 for hd in range(8)]
        PB = lambda a: PR + 16*(a & 1)
        def pread(g, jj):
            (hd, nt), sg = STEP[g >> 2], g & 3
            base = WOS[hd % 3]
            if nt < 8:
                hi = base >= 64*KB
                a, off = (16 if hi else 4) + (nt & 1), base - hi*64*KB + sg*8192 + jj*1024 + (nt >> 1)*256
            else:
                a, off = 18, 4096*(hd % 3) + sg*1024 + jj*256
            e.ds(f"ds_read_b64_tr_b16 {vr(FA + 4*(g & 7) + 2*jj, 2)}, v{a} offset:{off}", f"a{g}")
        def vread(hd, sg, kt):
            e.ds(f"ds_read_b128 {vr(VS[hd] + 8*sg + 4*kt)}, v{24 + (sg & 1)} offset:{vslot(hd, sg >> 1) - VH[0] + kt*2048}", f"vf{hd}_{sg}")
        e(f"v_mov_b32 v24, v12\nv_xor_b32 v25, 64, v12\nv_add_u32 v18, {W9}, v3")
        fcheck(21)
        self.pt('h0')
        for sg in range(4): vread(0, sg, 0); vread(0, sg, 1)
        for g in range(D): pread(g, 0); pread(g, 1)
        if not c.safebar: e("s_barrier")
        fixed.clear(); soft = {}
        def at(N, ops): soft.setdefault(N, []).extend(ops)
        if c.safebar: fx((0, 0), ("f", lambda: (e.wait(lg="vf0_3"), e("s_barrier"))))
        for hd in range(1, 8):
            N = START[hd]
            assert D == 6
            if hd == 6 and c.early: N -= c.early
            fx((N - 3, 3), ("d", "ds_read_b32 v21, v22", "full"))
            if hd in c.late and hd > 1:
                fx((N - 2, 3), ("f", lambda hd=hd: fcmp(20 + 2*hd)))
                fx((N - 2, 4), ("f", lambda hd=hd: (fbranch(20 + 2*hd), self.pt(f'h{hd}'))))
                fx((N - 2, 6), ("d", "ds_read_b32 v21, v22", "full"))
                fx((N - 1, 0), ("f", lambda hd=hd: fcmp(21 + 2*hd)))
                fx((N - 1, 1), ("f", lambda hd=hd: fbranch(21 + 2*hd)))
                for k, sl in enumerate((3, 4, 5, 6)):
                    fx((N - 1, sl), ("f", lambda hd=hd, k=k: (vread(hd, k, 0), vread(hd, k, 1))))
                bp = (N, 3)
            else:
                fx((N - 2, c.chk), ("f", lambda hd=hd: fcmp(21 + 2*hd)))
                fx((N - 2, c.chk + 1), ("f", lambda hd=hd: (fbranch(21 + 2*hd), self.pt(f'h{hd}'))))
                vp = [(N - 2, 3), (N - 2, 5), (N - 2, 6), (N - 2, 8), (N - 1, 0), (N - 1, 1), (N - 1, 3), (N - 1, 5), (N - 1, 6)]
                for k, pos in enumerate(vp[:8] if c.chk == 0 else vp[1:]):
                    fx(pos, ("f", lambda hd=hd, k=k: vread(hd, k >> 1, k & 1)))
                bp = (N - 1, 8) if c.chk == 0 else (N, 0)
            if hd < 7: fx(bp, ("f", lambda hd=hd: (e.wait(lg=f"vf{hd}_3"), e("s_barrier"), self.pt(f'b{hd}'))))
        def ploads(a):
            return [f"buffer_load_dwordx4 {vr(PB(a) + 4*k)}, v10, {S(R0)}, s{sH + a} offen offset:{k*1024} sc1" for k in range(4)] + \
                   [f"buffer_load_dword v14, v11, {S(R0)}, s{sH + a} offen sc1"]
        def pcheck(a):
            ops = xorall(14, PB(a), "v14")
            L = [("f", lambda: (self.pt(f'c{a}q'), e.wait(vm=f"P{a}"), e(ops[0])))] + [("s", x) for x in ops[1:]]
            L.append(("f", lambda: (e(f"v_cmp_ne_u32 vcc, s{sTAG}, v14\ns_cbranch_vccnz L_p_spin{a}\nL_p_ok{a}:"), self.pt(f'c{a}'))))
            nl = "\n"
            self.ool.append(f"""
            L_p_spin{a}:
            s_mov_b32 s{sSPIN}, 0
            L_p_lp{a}:
            {nl.join(ploads(a))}
            s_add_u32 s{sSPIN}, s{sSPIN}, 1
            s_cmp_lt_u32 s{sSPIN}, 0x10000
            s_waitcnt vmcnt(0)
            s_cbranch_scc0 L_p_ok{a}
            {nl.join(ops)}
            v_cmp_ne_u32 vcc, s{sTAG}, v14
            s_cbranch_vccnz L_p_lp{a}
            s_branch L_p_ok{a}
            """)
            return L
        for a in range(1, 4):
            at(c.pl_at[a - 1], [("v", x, f"P{a}") for x in ploads(a)])
            assert c.pl_at[a - 1] < c.pc_at[a - 1] <= 18*a - 1 and (a == 1 or c.pl_at[a - 1] > max(c.pc_at[a - 2] + 2, 18*a - 16))
            at(c.pc_at[a - 1], pcheck(a))
        NF = 28
        nin = []
        for rt in range(2):
            a = NA + 4*rt
            nin += [f"v_cvt_pk_bf16_f32 v{a}, v{a}, v{a+1}", f"v_cvt_pk_bf16_f32 v{a+1}, v{a+2}, v{a+3}"]
        for rt in range(2):
            a = NA + 4*rt
            nin += [f"v_mov_b32_dpp v{a+2}, v{a} row_ror:8 row_mask:0xf bank_mask:0xf", f"v_mov_b32_dpp v{a+3}, v{a+1} row_ror:8 row_mask:0xf bank_mask:0xf"]
        for rt in range(2):
            a = NA + 4*rt
            nin += [f"v_cndmask_b32 v{a}, v{a+3}, v{a}, s[{sM0}:{sM0+1}]", f"v_cndmask_b32 v{a+1}, v{a+1}, v{a+2}, s[{sM0}:{sM0+1}]"]
        for rt in range(2):
            a = NA + 4*rt
            nin += [f"v_cndmask_b32 v{NF + rt}, v{a}, v{a+1}, s[{sM1}:{sM1+1}]", f"v_cndmask_b32 v{NF + 2 + rt}, v{a+1}, v{a}, s[{sM1}:{sM1+1}]"]
        E0 = 4 if c.early else 0
        at(66 - E0, [("s", x) for x in nin])
        def send(Tp, k):
            d = PT[Tp]
            ops = [("s", f"v_cvt_pk_bf16_f32 v{d + i + k}, v{d + 2*i}, v{d + 2*i + 1}") for i in range(3*k, min(3*k + 3, 8))]
            if k == 2: ops.append(("s", f"v_mov_b32 v{d + 10}, v{NF + Tp}"))
            ops.append(("s", f"v_mov_b32 v{d + 4*k + 3}, s{sTAG}"))
            if not (c.x_nounit0 and k == 0): ops.append(("v", f"buffer_store_dwordx4 {vr(d + 4*k)}, v10, {S(R3)}, s{sSND + Tp} offen offset:{1024*k} sc1", None))
            return ops
        for k in range(3):
            at(68 - E0 + k, send(2, k) + send(3, k))
            at(72 + k, send(1, k))
        q = []
        def s2(N, rt):
            hd, nt = STEP[N]
            if hd >= 2 and hd % 2 == 0 and N == START[hd]: assert not q, "P check still queued"
            acc = vr(PA(nt, rt))
            e(f"{MF} {acc}, {vr(VWB + 4*(N & 1))}, {vr(PB(hd >> 1) + 8*(hd & 1) + 4*rt)}, {acc if hd else 0}")
        def cvt(N, k): e(f"v_cvt_pk_bf16_f32 v{VWB + 4*(N & 1) + k}, v{VWA + 8*(N & 1) + 2*k}, v{VWA + 8*(N & 1) + 2*k + 1}")
        ORD = ['M0', 'M1', 'Sa', 'M2', 'M3', 'M4', 'M5', 'Sb', 'M6', 'M7']
        for N in range(74):
            hd = STEP[min(N, 71)][0]
            q += soft.get(N, [])
            for slot, nm in enumerate(ORD):
                used = 0
                if nm[0] == 'S':
                    rt = int(nm == 'Sb')
                    if N >= 2: s2(N - 2, rt)
                    if 1 <= N <= 72: cvt(N - 1, 2*rt); cvt(N - 1, 2*rt + 1); used += 2
                elif N < 72:
                    m = int(nm[1]); g, kt = 4*N + (m >> 1), m & 1
                    if N == START[hd] and kt == 0: e.wait(lg=f"vf{hd}_{g & 3}")
                    if m in (0, 4): e.wait(lg=f"a{g + 1}")
                    acc = vr(VWA + 8*(N & 1) + 4*kt)
                    e(f"{MF} {acc}, {vr(VS[hd] + 8*(g & 3) + 4*kt)}, {vr(FA + 4*(g & 7))}, {acc if g & 3 else 0}")
                    for op in fixed.get((N, slot), []): emit_op(op); used += 1
                    if g + D < 288: pread(g + D, kt); used += 1
                    if m in (3, 7): used += 1
                else: continue
                while used < 2 and q:
                    emit_op(q.pop(0)); used += 1
        self.pt('p2end')
        for op in q + soft[74]: emit_op(op)
        RB = 104
        e(f"s_mov_b32 s{sSPIN}, 0")
        if c.pts and 'ack' in c.pts: e("s_waitcnt vmcnt(0)"); self.pt('ack')
        T = 144
        def fetch(name, msgs, light):
            e(f"L_{name}_lp:")
            if light:
                e(f"""
                buffer_load_dword v9, v{light}, {S(R3)}, s{sT2} offen sc1
                s_add_u32 s{sSPIN}, s{sSPIN}, 1
                s_cmp_lt_u32 s{sSPIN}, 0x10000
                s_waitcnt vmcnt(0)
                s_cbranch_scc0 L_{name}_full
                v_cmp_ne_u32 vcc, s{sTAG}, v9
                s_cbranch_vccnz L_{name}_lp
                L_{name}_full:
                """)
            else: e(f"s_add_u32 s{sSPIN}, s{sSPIN}, 1")
            us = [RB + 12*(a - 1) + 4*k for a in msgs for k in range(3)]
            for a in msgs:
                for k in range(3): e(f"buffer_load_dwordx4 {vr(RB + 12*(a - 1) + 4*k)}, v10, {S(R3)}, s{sH + 4 + a} offen offset:{1024*k} sc1")
            for n, u in enumerate(us):
                e(f"s_waitcnt vmcnt({len(us) - 1 - n})")
                e(f"v_xor_b32 v9, s{sTAG}, v{u + 3}" if n == 0 else f"v_bitop3_b32 v9, v{u + 3}, s{sTAG}, v9 bitop3:0xbe")
            e(f"""
            v_cmp_ne_u32 vcc, 0, v9
            s_cmp_lt_u32 s{sSPIN}, 0x10000
            s_cbranch_scc0 L_{name}_ok
            s_cbranch_vccnz L_{name}_lp
            L_{name}_ok:
            """)
        def add(a):
            for hf in range(2):
                for i in range(4*hf, 4*hf + 4):
                    d = RB + 12*(a - 1) + i + i // 3
                    e(f"v_lshlrev_b32 v{T + 2*(i&3)}, 16, v{d}\nv_and_b32 v{T + 1 + 2*(i&3)}, s{sT0}, v{d}")
                for i in range(4*hf, 4*hf + 4):
                    e(f"v_pk_add_f32 {vr(PT[0] + 2*i, 2)}, {vr(PT[0] + 2*i, 2)}, {vr(T + 2*(i&3), 2)}")
            d = RB + 12*(a - 1) + 10
            e(f"v_lshlrev_b32 v{T}, 16, v{d}\nv_and_b32 v{T + 1}, s{sT0}, v{d}\nv_pk_add_f32 v[100:101], v[100:101], {vr(T, 2)}")
        e(f"s_mov_b32 s{sT0}, 0xffff0000\nv_lshlrev_b32 v100, 16, v{NF}\nv_and_b32 v101, s{sT0}, v{NF}")
        if c.fin == 'light':
            fetch("fa", [1, 2, 3], 8); self.pt('cf')
            add(2); add(3)
        else:
            e(f"v_and_b32 v4, 1, v1\nv_add_u32 v4, 2, v4\nv_xor_b32 v4, s{sKG}, v4\nv_lshlrev_b32 v4, 12, v4\nv_add_u32 v4, {2048 + 1020}, v4")
            e(f"s_xor_b32 s{sT1}, s{sKG}, 1\ns_lshl_b32 s{sT1}, s{sT1}, 12\ns_add_u32 s{sT1}, s{sT1}, {2048 + 1020}\nv_mov_b32 v5, s{sT1}")
            fetch("fa", [2, 3], 4 if c.fin[0] == 'l' else None); self.pt('lp')
            if c.fin[1] == 'f':
                for k in range(3): e(f"buffer_load_dwordx4 {vr(RB + 4*k)}, v10, {S(R3)}, s{sH + 5} offen offset:{1024*k} sc1")
            add(2); add(3)
            if c.fin[1] == 'f':
                e(f"""
                s_waitcnt vmcnt(0)
                v_xor_b32 v9, s{sTAG}, v{RB + 3}
                v_bitop3_b32 v9, v{RB + 7}, s{sTAG}, v9 bitop3:0xbe
                v_bitop3_b32 v9, v{RB + 11}, s{sTAG}, v9 bitop3:0xbe
                v_cmp_ne_u32 vcc, 0, v9
                s_cbranch_vccz L_fb_ok
                """)
            fetch("fb", [1], 5 if c.fin[2] == 'l' else None); self.pt('cf')
        e(f"""
        s_cmp_eq_u32 s{sOWN}, 0
        s_cbranch_scc0 L_noep
        s_add_u32 s{sT1}, s{sE}, 4
        v_mov_b32 v15, s{sT1}
        buffer_store_dword v15, v13, {S(R2)}, 0 offen sc1
        L_noep:
        """)
        add(1)
        for i in range(8): e(f"v_cvt_pk_bf16_f32 v{T + i}, v{PT[0] + 2*i}, v{PT[0] + 2*i + 1}")
        e("v_cvt_pk_bf16_f32 v100, v100, v101")
        for u in range(2):
            for q in range(2): e(f"v_permlane16_swap_b32 v{T + 4*u + q}, v{T + 4*u + 2 + q}")
        if c.noout < 1: e(f"buffer_store_dword v100, v6, {S(R4)}, s{sSND} offen {c.pol_out}")
        for u in range(2):
            if c.noout < 2: e(f"buffer_store_dwordx4 {vr(T + 4*u)}, v7, {S(R4)}, s{sU} offen offset:{64*u} {c.pol_out}")
        self.pt('end')
        self.dump(False)
        if c.padfrom:
            e("""
            L_pad:
            s_memrealtime s[50:51]
            s_waitcnt lgkmcnt(0)
            s_sub_u32 s50, s50, s54
            s_cmp_lt_u32 s50, 3000
            s_cbranch_scc1 L_pad
            """)
        e("s_endpgm")
        for b in self.ool: e(b)

    def build(self):
        self.entry(); self.helper(); self.compute()
        self.e("L_end:\ns_endpgm")
        lines, added = insert_nops(self.e.L)
        hdr = open("cdna_kernels/" + NAME + ".s.ref").read().split("\n")
        top = [l for l in hdr if l.startswith(";") and "@launch" not in l]
        out = "\n".join(top) + f"\n; @launch grid=(256,1,1) block=(512,1,1) lds={LDS_BYTES}\n"
        if self.c.pts: out += "; PTS " + " ".join(self.ptorder) + "\n"
        out += f""".amdgcn_target "amdgcn-amd-amdhsa--gfx950"
.text
.globl {NAME}_kernel
.p2align 8
.type {NAME}_kernel,@function
{NAME}_kernel:
"""
        out += "\n".join((l if l.endswith(":") else "    " + l) for l in lines)
        out += f"""
.section .rodata,"a"
.p2align 6
.amdhsa_kernel {NAME}_kernel
  .amdhsa_next_free_vgpr 256
  .amdhsa_next_free_sgpr 102
  .amdhsa_accum_offset 256
  .amdhsa_group_segment_fixed_size 0
  .amdhsa_kernarg_size 104
  .amdhsa_user_sgpr_count 2
  .amdhsa_user_sgpr_kernarg_segment_ptr 1
  .amdhsa_system_sgpr_workgroup_id_x 1
.end_amdhsa_kernel
"""
        return out, added

def make(path, **kw):
    cfg = Cfg()
    for k, v in kw.items():
        assert hasattr(cfg, k), k
        setattr(cfg, k, v)
    txt, added = G(cfg).build()
    open(path, "w").write(txt)
    return added

if __name__ == "__main__":
    print("nops added", make("cdna_kernels/" + NAME + ".s"))
```

```python
import sys, copy
from asmlib import E, insert_nops

NAME = "concat_heads__mha_block_cached__mha_block_cached__near_ridge"

class Cfg:
    pol_x = ""; pol_wq = ""; pol_k = "nt"; pol_v = ""; pol_wo = ""; pol_wot = ""
    bursts = [4, 8, 12, 16]
    nstag = 2; sstep = 2
    t_split = 3; t0_at = 10; t_lead = 3; t1_at = 20
    wo0_at = 14
    pl_at = [8, 25, 43]
    nstart = 4
    fin = 'light'
    hsleep = 1
    dist = 6
    pc_at = [14, 30, 48]
    free_ds = 16
    pkfma = False
    tlbpf = 0; tlbh = False
    x_relax = 0
    trace = None
    wo1_at = 18; v1a_ord = 0.5; late = (1, 2, 3, 4, 5, 6, 7); chk = 0
    t_ord = 0.5
    pol_x1 = ''; pol_wq1 = ''; nfirst = 6; pol_v1 = ''
    padfrom = None
    t_main = True
    npre = 4
    safebar = 3
    free_pos = 4
    early = 2
    v_ord = 1
    sched = None
    x_nounit0 = False; x_noninth = False
    lp_unit = 2; lp_depth = 1; lp_sleep = 0
    noout = 0
    pol_out = ''
    wo2_at = 20
    tail_at = 42
    codepf = True
    freerun = False
    diag = False; pts = None; dbgout = None; clk = False; fine = False; nodma = False
    ws_o = 0; ws_p = 16 << 20; ws_f = 32 << 20; ws_e = 40 << 20; ws_t = 41 << 20; ws_s = 48 << 20

KB = 1024
WS_ = [0, 32*KB, 80*KB, 48*KB, 64*KB, 112*KB]
XS_ = [16*KB, 96*KB, 128*KB]
FULLA, FREEA, FREEB = 144*KB, 145*KB, 146*KB
KR, KR1, VR = 80*KB, 48*KB, 112*KB
WOS = [0, 32*KB, 64*KB]
W9 = 147*KB
VH = [96*KB, 112*KB, 128*KB]
def vslot(hd, half): return VH[(2*hd + half + 1) % 3]
LDS_BYTES = 163840
HORD = [(0, 0), (0, 1), (1, 0), (1, 1), (2, 0), (2, 1), (3, 0), (3, 1)]
NTO = [8, 4, 5, 6, 7, 0, 1, 2, 3]

sW, sBLK, sKG, sBG, sHP, sWL, sB = 4, 5, 6, 7, 8, 9, 10
pX, pK, pV, pWQ, pWO, pOUT, pDBG, pWS = 44, 46, 48, 50, 52, 36, 38, 40
R0, R1, R2, R3, R4, R5 = 56, 60, 64, 68, 72, 96
sT0, sT1, sT2 = 3, 11, 12
sSTG, sE, sXO, sFV = 13, 14, 15, 15
RT, sFM, sHV = 20, 24, 25
sH = 76
sKB, sVB, sC, sSPIN, sOWN, sSND, sU, sRHO = 84, 85, 86, 87, 88, 89, 93, 94
sTAG, sM0, sM1 = 53, 48, 50

def srd(e, R, ptr, off, records):
    if off is None: e(f"s_mov_b32 s{R}, s{ptr}\ns_mov_b32 s{R+1}, s{ptr+1}")
    else: e(f"s_add_u32 s{R}, s{ptr}, s{off}\ns_addc_u32 s{R+1}, s{ptr+1}, 0")
    e(f"s_mov_b32 s{R+2}, {records}\ns_mov_b32 s{R+3}, 0x00020000")
def S(R): return f"s[{R}:{R+3}]"
def vr(a, n=4): return f"v[{a}:{a+n-1}]" if n > 1 else f"v{a}"
MF = "v_mfma_f32_16x16x32_bf16"

class G:
    def __init__(self, cfg):
        if cfg.sched: cfg.nstag = len(cfg.sched); cfg.sstep = 1; cfg.bursts = []
        self.c = cfg; self.e = E(); self.ool = []; self.uid = 0; self.ptorder = []
    def U(self):
        self.uid += 1; return self.uid
    def clock(self): return f"s_mem{'' if self.c.clk else 'real'}time s[100:101]"
    def pt(self, label):
        if self.c.padfrom == label: self.e("s_memrealtime s[54:55]")
        if not self.c.pts or label not in self.c.pts: return
        k = len(self.ptorder); self.ptorder.append(label); assert k < 20
        if k: self.e(f"s_mov_b32 s{16 + k - 1}, s100")
        self.e(self.clock())
    def lane_stamp(self, k):
        if self.c.diag and (self.c.fine or k == 63):
            self.e(f"{self.clock()}\ns_waitcnt lgkmcnt(0)\nv_writelane_b32 v30, s100, {k}")
    def dump(self, helper):
        e = self.e; c = self.c
        if not c.diag: return
        e("s_waitcnt vmcnt(0) lgkmcnt(0)")
        if helper:
            if c.dbgout is not None: return
            e(f"s_lshl_b32 s{sT0}, s2, 3\ns_add_u32 s{sT0}, s{sT0}, s{sW}\ns_lshl_b32 s{sT0}, s{sT0}, 8\ns_add_u32 s{sT0}, s{sT0}, {c.ws_s + (1 << 20)}")
            srd(e, R0, pWS, sT0, 256)
            e(f"v_lshlrev_b32 v26, 2, v1\nbuffer_store_dword v30, v26, {S(R0)}, 0 offen\ns_waitcnt vmcnt(0)")
            return
        n = len(self.ptorder)
        e(f"s_mov_b32 s{16 + n - 1}, s100")
        if c.dbgout is not None:
            e(f"s_cmp_eq_u32 s2, {c.dbgout}\ns_cbranch_scc0 L_nodbg\ns_cmp_eq_u32 s{sW}, 0\ns_cbranch_scc0 L_nodbg")
            srd(e, R0, pDBG, None, 256)
            for k in range(n):
                e(f"s_sub_u32 s{sT0}, s{16 + k}, s16\nv_mov_b32 v110, s{sT0}\nbuffer_store_dword v110, off, {S(R0)}, 0 offset:{4*k}")
            e("s_waitcnt vmcnt(0)\nL_nodbg:")
            return
        e(f"s_lshl_b32 s{sT0}, s2, 3\ns_add_u32 s{sT0}, s{sT0}, s{sW}\ns_lshl_b32 s{sT0}, s{sT0}, 7\ns_add_u32 s{sT0}, s{sT0}, {c.ws_s}")
        srd(e, R0, pWS, sT0, 128)
        for k in range(n):
            e(f"v_mov_b32 v110, s{16 + k}\nbuffer_store_dword v110, off, {S(R0)}, 0 offset:{4*k}")
        e("s_waitcnt vmcnt(0)")

    def entry(self):
        self.pt("entry")
        self.e(f"""
        s_cmp_ge_u32 s2, 256
        s_cbranch_scc1 L_end
        s_load_dwordx16 s[16:31], s[0:1], 0
        s_load_dwordx8 s[32:39], s[0:1], 64
        s_load_dwordx2 s[40:41], s[0:1], 96
        v_lshrrev_b32 v2, 6, v0
        v_and_b32 v1, 63, v0
        v_readfirstlane_b32 s{sW}, v2
        s_and_b32 s{sT0}, s2, 7
        s_lshr_b32 s{sBLK}, s{sT0}, 2
        s_and_b32 s{sKG}, s2, 3
        s_lshr_b32 s{sBG}, s2, 5
        s_bfe_u32 s{sHP}, s2, 0x20003
        s_and_b32 s{sWL}, s{sW}, 3
        s_lshl_b32 s{sB}, s{sBG}, 2
        s_add_u32 s{sB}, s{sB}, s{sWL}
        s_cmp_lt_u32 s{sW}, 4
        s_cbranch_scc1 L_compute
        """)

    def vm(self, txt, tag=None):
        self.e.vmem(txt if not self.c.nodma else "s_nop 0", tag)
    def dma4(self, R, voffs, m0, soff, pol, tag, pre=None):
        e = self.e
        e(f"s_add_u32 m0, s{m0[0]}, {m0[1]}")
        if pre: e(pre)
        for j in range(4):
            self.vm(f"buffer_load_dwordx4 v{voffs[j]}, {S(R)}, s{soff} offen offset:{j*1024} {pol} lds", tag)
    def hs(self, j):
        c = self.c
        if j % 2 == 0:
            pre = f"s_mov_b32 s{sXO}, 0\ns_mov_b32 s{sSTG}, 0" if j == 0 else \
                  f"s_add_u32 s{sRHO}, s{sRHO}, 1\ns_lshl_b32 s{sXO}, s{sRHO}, 7\ns_lshl_b32 s{sSTG}, s{sRHO}, 19\ns_and_b32 s{sRHO}, s{sRHO}, 7"
            if c.nstart == 3:
                pre = f"s_lshl_b32 s{sXO}, s{sRHO}, 7\ns_lshl_b32 s{sSTG}, s{sRHO}, 19"
                if j: pre = f"s_add_u32 s{sRHO}, s{sRHO}, 1\ns_cmp_eq_u32 s{sRHO}, 9\ns_cselect_b32 s{sRHO}, 0, s{sRHO}\n" + pre
            self.dma4(R5, [160, 161, 162, 163], (sOWN, XS_[(j >> 1) % 3]), sXO, c.pol_x1 if j < c.nfirst else c.pol_x, None, pre)
            self.dma4(R0, [4, 5, 6, 7], (sOWN, WS_[j % 6]), sSTG, c.pol_wq1 if j < c.nfirst else c.pol_wq, None)
        else:
            self.dma4(R0, [4, 5, 6, 7], (sOWN, WS_[j % 6]), sSTG, c.pol_wq1 if j < c.nfirst else c.pol_wq, None, f"s_add_u32 s{sSTG}, s{sSTG}, 262144")
    def sflag(self, val):
        self.e(f"s_mov_b32 m0, s{sFM}\ns_mov_b32 s{sT1}, {4*val}")
        self.e.vmem(f"buffer_load_dword off, {S(RT)}, s{sT1} lds", f"sf{val}")
    def publish(self, val):
        self.e.wait(vm="sf18")
        self.e(f"s_waitcnt lgkmcnt(0)\nv_mov_b32 v28, {val}\nds_max_u32 v27, v28")
        self.lane_stamp(val)
    def kv_burst(self, g):
        e = self.e; c = self.c
        for a in range(2):
            if g < 2: e(f"s_mov_b32 s{sU}, {g*8192 + a*4096}")
            else: e(f"s_add_u32 s{sU}, s{sHV + g - 2}, {a*128}")
            for j in range(4):
                self.vm(f"buffer_load_dwordx4 {vr(32 + 32*g + 16*a + 4*j)}, v{(8 if g < 2 else 164) + j}, {S(R1 if g < 2 else R2)}, s{sU} offen offset:{j*1024} {c.pol_k if g < 2 else c.pol_v1}", f"kv{g}")
    def k_write(self, g):
        self.e.wait(vm=f"kv{g}")
        for p in range(8): self.e(f"ds_write_b128 v19, {vr(32 + 32*g + 4*p)} offset:{g*(VR - KR) + p*1024}")
    def v_write(self, hd, half):
        self.e.wait(vm=f"kv{2 + hd}")
        for p in range(4): self.e(f"ds_write_b128 v18, {vr(96 + 32*hd + 16*half + 4*p)} offset:{vslot(hd, half) - VH[0] + p*1024}")
    def wo(self, hd):
        c = self.c; slot = WOS[hd % 3]
        self.lane_stamp(50 + hd)
        self.dma4(R3, [13, 14, 15, 16], (sKB, slot), sH + hd, c.pol_wo, f"wo{hd}")
        self.dma4(R3, [13, 14, 15, 16], (sKB, slot + 4096), sT1, c.pol_wo, f"wo{hd}", f"s_add_u32 s{sT1}, s{sH + hd}, 18432")
        self.e(f"s_add_u32 m0, s{sVB}, {W9 + 4096*(hd % 3)}")
        if c.x_noninth:
            if hd < 2:
                for k in range(4): self.vm(f"buffer_load_dwordx4 v13, {S(R3)}, s{sH + hd} offen {c.pol_wo} lds", f"wo{hd}")
        else: self.vm(f"buffer_load_dwordx4 v17, {S(R3)}, s{sH + hd} offen {c.pol_wo} lds", f"wo{hd}")
    def vdma(self, hd, half):
        self.dma4(R2, [164, 165, 166, 167], (sOWN, vslot(hd, half)), sT1, self.c.pol_v, None, f"s_add_u32 s{sT1}, s{sHV + hd}, {128*half}")
    def touch(self, hds):
        if not hds: return
        u = self.U()
        self.e(f"s_cmp_eq_u32 s{sW}, 7\ns_cbranch_scc0 L_nt{u}")
        for hd in hds:
            self.e(f"buffer_load_dword v24, v{25 if hd < 2 or not self.c.t_main else 31}, {S(R4)}, s{sH+hd} offen {self.c.pol_wot}" if not self.c.nodma else "s_nop 0")
        self.e(f"L_nt{u}:")
    def fsrc(self, thr):
        return "ds_read_b32 v29, v26" + (f" offset:{FREEB - FREEA}" if self.c.free_ds <= thr <= 20 else "")
    def need_free(self, thr):
        e = self.e
        if thr <= self.known_free: return
        self.known_free = thr
        if thr >= 21:
            assert not self.polled
            e("s_barrier"); return
        if self.c.freerun and thr < 16:
            self.polled = False; return
        u = self.U()
        if not self.polled: e(self.fsrc(thr))
        self.polled = False
        e(f"s_waitcnt lgkmcnt(0)\nv_cmp_gt_u32 vcc, {thr}, v29\ns_cbranch_vccnz L_fs{u}\nL_fo{u}:")
        self.hool.append(f"""
        L_fs{u}:
        s_mov_b32 s{sSPIN}, 0
        L_fl{u}:
        s_sleep {self.c.hsleep}
        {self.fsrc(thr)}
        s_add_u32 s{sSPIN}, s{sSPIN}, 1
        s_cmp_lt_u32 s{sSPIN}, 0x100000
        s_waitcnt lgkmcnt(0)
        s_cbranch_scc0 L_fo{u}
        v_cmp_gt_u32 vcc, {thr}, v29
        s_cbranch_vccnz L_fl{u}
        s_branch L_fo{u}
        """)
    def helper_body(self, off):
        e = self.e; c = self.c
        self.known_free = 0; self.polled = False; self.hool = []; self.names = []
        it = []
        for j in range(c.npre, 18): it.append((max(0, j - 5 + (1 - (j & 1)) - c.x_relax), 0, 'hs', j))
        sc = c.sched[off] if c.sched else None
        if sc: off = 0
        for g in range(4): it.append((sc[g] if sc else c.bursts[g] + (off if c.bursts[g] < 15 else 0), 1 if g < 2 else c.v_ord, 'kv', g))
        if c.t0_at is not None:
            it.append((sc[4] if sc else c.t0_at + (off if c.t0_at < 14 else 0), 2, 'touch', list(range(c.t_split))))
            if c.t1_at is None:
                for hd in range(c.t_split, 8): it.append((max(21, 20 + hd - c.t_lead), c.t_ord, 'touch', [hd]))
            else: it.append((c.t1_at + (off if c.t1_at < 14 else 0), 5, 'touch', list(range(c.t_split, 8))))
        it.append((max(14, c.wo0_at), 3, 'wo', 0))
        it += [(16, 0, 'kw', 0), (18, 0, 'kw', 1), (20, 0, 'vw', 0), (max(16, c.wo1_at), 3, 'wo', 1), (20, 1, 'wo', 2), (20, c.v1a_ord, 'v1a', 0), (21, 0, 'vw', 1)]
        for hd in range(2, 8):
            it.append((19 + hd, 0.7, 'va', hd))
            it.append((20 + hd, 0, 'v', hd))
            if hd + 1 < 8: it.append((20 + hd, 1, 'wo', hd + 1))
        it.sort(key=lambda t: (t[0], t[1]))
        late21 = False
        for n, (thr, _, kind, arg) in enumerate(it):
            self.need_free(thr)
            tr = c.trace is not None and n >= c.trace and 2*(n - c.trace) + 1 < 62
            if tr:
                self.names.append(f"{kind}{arg if not isinstance(arg, list) else ''}@{thr}")
                e(f"{self.clock()}\ns_waitcnt lgkmcnt(0)\nv_writelane_b32 v30, s100, {2*(n - c.trace)}")
            nxt = it[n + 1][0] if n + 1 < len(it) else 0
            if 21 > nxt > self.known_free and kind in ('hs', 'wo'):
                e(self.fsrc(nxt)); self.polled = True
            if kind == 'hs':
                self.hs(arg); self.sflag(arg + 1)
                if c.fine and c.freerun and arg in (3, 5, 9, 13, 17): e('s_waitcnt vmcnt(0)'); self.lane_stamp(32 + arg // 4)
            elif kind == 'kv': self.kv_burst(arg)
            elif kind == 'touch': self.touch(arg)
            elif kind == 'kw': self.k_write(arg); self.publish(19 + arg)
            elif kind == 'v1a': self.v_write(1, 0)
            elif kind == 'vw':
                if arg == 0: self.v_write(0, 0)
                self.v_write(arg, 1)
                e.wait(vm=f"wo{arg}"); self.publish(21 + 2*arg)
                if arg == 1 and 2 in c.late: self.sflag(24)
            elif kind == 'wo':
                self.wo(arg)
                if arg >= 3 and arg in c.late: self.sflag(20 + 2*arg)
            elif kind == 'va': self.vdma(arg, 0)
            elif kind == 'v':
                assert f"wo{arg}" in e.vm.tags
                self.vdma(arg, 1); self.sflag(21 + 2*arg)
            if tr: e(f"{self.clock()}\ns_waitcnt lgkmcnt(0)\nv_writelane_b32 v30, s100, {2*(n - c.trace) + 1}")
        self.lane_stamp(63)
        self.dump(True)
        e("s_endpgm")
        for b in self.hool: e(b)
    def head_offsets(self, bases):
        for hd, (a, r) in enumerate(HORD):
            if r == 0: self.e(f"s_add_u32 s{sT0}, s{sHP}, {a}\ns_and_b32 s{sT0}, s{sT0}, 3\ns_lshl_b32 s{sT0}, s{sT0}, 1")
            else: self.e(f"s_add_u32 s{sT0}, s{sT0}, 1")
            for base, mul in bases: self.e(f"s_mul_i32 s{base + hd}, s{sT0}, {mul}")
    def helper(self):
        e = self.e; c = self.c
        e.vm.__init__('vmcnt', 63)
        e(f"""
        v_lshrrev_b32 v20, 3, v1
        v_mul_u32_u24 v20, 1152, v20
        v_and_b32 v21, 7, v1
        v_lshrrev_b32 v22, 4, v1
        v_xor_b32 v21, v21, v22
        v_lshlrev_b32 v21, 4, v21
        v_add_u32 v160, v20, v21
        v_xor_b32 v21, 64, v21
        v_add_u32 v161, v20, v21
        v_add_u32 v162, 16384, v160
        v_add_u32 v163, 24576, v161
        v_add_u32 v161, 8192, v161
        v_bfe_u32 v23, v1, 2, 2
        v_lshlrev_b32 v21, 6, v22
        v_lshl_add_u32 v20, v23, 13, v21
        v_and_b32 v21, 3, v1
        v_lshl_add_u32 v4, v21, 4, v20
        v_add_u32 v5, 31744, v4
        v_xor_b32 v7, 32, v4
        v_add_u32 v6, 63488, v7
        v_add_u32 v7, 95232, v7
        v_lshlrev_b32 v20, 2, v1
        s_lshl_b32 s{sRHO}, s{sHP}, {1 if c.nstart == 8 else 0}
        s_add_u32 s{sRHO}, s{sRHO}, s{sBG}
        {f"s_and_b32 s{sRHO}, s{sRHO}, {c.nstart - 1}" if c.nstart != 3 else f"s_mul_i32 s{sT0}, s{sRHO}, 11"}
        {f"s_mul_i32 s{sRHO}, s{sRHO}, {8 // c.nstart}" if c.nstart != 3 else f"s_lshr_b32 s{sT0}, s{sT0}, 5"}
        {"" if c.nstart != 3 else f"s_mul_i32 s{sT0}, s{sT0}, 3"}
        {"" if c.nstart != 3 else f"s_sub_u32 s{sRHO}, s{sRHO}, s{sT0}"}
        {"" if c.nstart != 3 else f"s_mul_i32 s{sRHO}, s{sRHO}, 3"}
        s_lshr_b32 s{sT2}, s{sWL}, 1
        s_lshl_b32 s{sT0}, s{sKG}, 3
        s_lshl_b32 s{sT1}, s{sHP}, 1
        s_add_u32 s{sT0}, s{sT0}, s{sT1}
        s_add_u32 s{sT0}, s{sT0}, s{sT2}
        s_lshl_b32 s{sT0}, s{sT0}, 8
        s_and_b32 s{sT1}, s{sWL}, 1
        s_lshl_b32 s{sT1}, s{sT1}, 17
        s_add_u32 s{sT0}, s{sT0}, s{sT1}
        s_sub_u32 s{R0+2}, 4718592, s{sT0}
        s_mov_b32 s{R0+3}, 0x00020000
        s_mul_i32 s{sT1}, s{sB}, 36864
        s_mov_b32 s{R5+2}, 36864
        s_mov_b32 s{R5+3}, 0x00020000
        s_lshl_b32 s{sT2}, s2, 8
        s_add_u32 s{sT2}, s{sT2}, {c.ws_t}
        s_lshl_b32 s{sOWN}, s{sWL}, 12
        s_cmp_eq_u32 s{sBLK}, 0
        s_waitcnt lgkmcnt(0)
        s_cselect_b64 s[{pX}:{pX+1}], s[16:17], s[26:27]
        s_cselect_b64 s[{pWQ}:{pWQ+1}], s[22:23], s[32:33]
        s_cselect_b64 s[{pK}:{pK+1}], s[18:19], s[28:29]
        s_cselect_b64 s[{pV}:{pV+1}], s[20:21], s[30:31]
        s_cselect_b64 s[{pWO}:{pWO+1}], s[24:25], s[34:35]
        s_add_u32 s{R5}, s{pX}, s{sT1}
        s_addc_u32 s{R5+1}, s{pX+1}, 0
        s_add_u32 s{R0}, s{pWQ}, s{sT0}
        s_addc_u32 s{R0+1}, s{pWQ+1}, 0
        """)
        srd(e, RT, pWS, sT2, 256)
        e.vmem(f"buffer_store_dword v1, v20, {S(RT)}, 0 offen sc1", 'tab')
        self.hs(0)
        e(f"""
        v_mul_u32_u24 v26, 260, v21
        v_add_u32 v26, {FREEA}, v26
        s_lshl_b32 s{sFM}, s{sWL}, 8
        s_add_u32 s{sFM}, s{sFM}, {FULLA}
        v_lshl_add_u32 v27, v1, 2, s{sFM}
        """)
        e("s_barrier")
        e.wait(vm='tab')
        self.sflag(1)
        for j in range(1, c.npre): self.hs(j); self.sflag(j + 1)
        e(f"""
        s_lshl_b32 s{sT0}, s{sB}, 5
        s_lshl_b32 s{sT1}, s{sKG}, 3
        s_add_u32 s{sT0}, s{sT0}, s{sT1}
        s_lshl_b32 s{sT2}, s{sT0}, 13
        """)
        srd(e, R2, pV, sT2, 65536)
        e(f"s_lshl_b32 s{sT1}, s{sHP}, 14\ns_add_u32 s{sT2}, s{sT2}, s{sT1}")
        srd(e, R1, pK, sT2, 16384)
        e(f"""
        v_and_b32 v20, 15, v1
        v_xor_b32 v20, v20, v22
        v_lshlrev_b32 v20, 4, v20
        v_lshl_add_u32 v8, v22, 8, v20
        v_xor_b32 v9, 64, v8
        v_xor_b32 v10, 0x80, v8
        v_xor_b32 v11, 0xc0, v8
        s_lshl_b32 s{sKB}, s{sWL}, 13
        s_lshl_b32 s{sVB}, s{sWL}, 10
        s_add_u32 s{sT0}, s{sKB}, {KR}
        v_lshl_add_u32 v19, v1, 4, s{sT0}
        s_add_u32 s{sT0}, s{sOWN}, {VH[0]}
        v_lshl_add_u32 v18, v1, 4, s{sT0}
        v_lshrrev_b32 v20, 3, v1
        v_and_b32 v164, 7, v1
        v_xor_b32 v164, v164, v22
        v_lshlrev_b32 v164, 4, v164
        v_lshl_add_u32 v164, v20, 8, v164
        v_xor_b32 v165, 64, v164
        v_add_u32 v166, 2048, v164
        v_add_u32 v167, 3072, v165
        v_add_u32 v165, 1024, v165
        s_mul_i32 s{sT0}, s{sKG}, 1179648
        """)
        srd(e, R4, pWO, sT0, 1179648)
        e(f"""
        s_mul_i32 s{sT1}, s{sWL}, 36864
        s_add_u32 s{sT0}, s{sT0}, s{sT1}
        s_lshl_b32 s{sT1}, s{sHP}, 8
        s_add_u32 s{sT0}, s{sT0}, s{sT1}
        s_sub_u32 s{sT2}, 4718592, s{sT0}
        """)
        srd(e, R3, pWO, sT0, f"s{sT2}")
        e(f"""
        s_and_b32 s{sT0}, s{sKG}, 2
        v_xor_b32 v20, s{sT0}, v22
        v_mul_u32_u24 v23, 1152, v23
        v_lshl_add_u32 v23, v20, 6, v23
        v_lshl_add_u32 v13, v21, 4, v23
        v_add_u32 v14, 3584, v13
        v_xor_b32 v16, 32, v13
        v_add_u32 v15, 7168, v16
        v_add_u32 v16, 10752, v16
        v_bfe_u32 v20, v1, 1, 2
        v_bfe_u32 v21, v1, 3, 1
        v_lshl_add_u32 v20, v21, 3, v20
        v_bfe_u32 v21, v1, 4, 1
        v_lshl_add_u32 v20, v21, 2, v20
        v_bfe_u32 v22, v1, 5, 1
        v_lshl_add_u32 v20, v22, 4, v20
        v_mul_u32_u24 v20, 1152, v20
        v_and_b32 v22, 1, v1
        v_lshl_add_u32 v20, v22, 4, v20
        s_mul_i32 s{sT0}, s{sHP}, 224
        s_sub_u32 s{sT0}, 1024, s{sT0}
        v_add_u32 v17, s{sT0}, v20
        s_lshl_b32 s{sT0}, s{sBG}, 4
        v_and_b32 v20, 15, v1
        v_add_u32 v20, s{sT0}, v20
        v_mul_u32_u24 v20, 1152, v20
        v_lshl_add_u32 v21, v21, 7, s{sT1}
        v_add_u32 v31, v20, v21
        v_mov_b32 v22, 1024
        v_cmp_gt_u32 vcc, 32, v1
        v_cndmask_b32 v21, v22, v21, vcc
        v_add_u32 v25, v20, v21
        """)
        if c.tlbh:
            for R in (R1, R2, R3): e.vmem(f"buffer_load_dword v24, off, {S(R)}, 0 nt")
        self.head_offsets([(sH, 147456), (sHV, 8192)])
        if c.nstag > 1:
            e(f"s_and_b32 s{sT0}, s{sBG}, {c.nstag - 1}")
            for o in range(1, c.nstag): e(f"s_cmp_eq_u32 s{sT0}, {o}\ns_cbranch_scc1 L_hv{o}")
        saved = copy.deepcopy(e.vm)
        for o in range(c.nstag):
            e.vm = copy.deepcopy(saved)
            if o: e(f"L_hv{o}:")
            self.helper_body(o * c.sstep)

    def compute(self):
        e = self.e; c = self.c
        e.vm.__init__('vmcnt', 63); e.lg.__init__('lgkmcnt', 15)
        ACC, FA, FB, D = 32, 160, 192, c.dist
        e("L_compute:")
        e(f"""
        v_lshlrev_b32 v2, 2, v0
        v_add_u32 v2, {FULLA}, v2
        v_mov_b32 v3, 0
        ds_write_b32 v2, v3
        ds_write_b32 v2, v3 offset:{FREEA - FULLA}
        ds_write_b32 v2, v3 offset:{FREEB - FULLA}
        s_waitcnt lgkmcnt(0)
        """)
        self.pt('ka')
        e("s_barrier")
        self.pt('lc')
        e(f"s_lshl_b32 s{sT0}, s2, 8\ns_add_u32 s{sT0}, s{sT0}, {c.ws_t}")
        srd(e, R5, pWS, sT0, 256)
        e(f"v_and_b32 v16, 31, v1\nv_lshlrev_b32 v13, 2, v16")
        e(f"""
        s_lshl_b32 s{sT0}, s{sBLK}, 5
        s_add_u32 s{sT2}, s{sT0}, s{sB}
        s_lshl_b32 s{sT0}, s{sT2}, 7
        s_add_u32 s{sT0}, s{sT0}, {c.ws_e}
        """)
        srd(e, R2, pWS, sT0, 128)
        if c.codepf:
            e(f"""
            s_getpc_b64 s[90:91]
            L_pc:
            s_lshr_b32 s{sT0}, s2, 3
            s_lshl_b32 s{sT0}, s{sT0}, 2
            s_add_u32 s{sT0}, s{sT0}, s{sWL}
            s_lshl_b32 s{sT0}, s{sT0}, 9
            v_and_b32 v17, 3, v1
            v_lshl_add_u32 v17, v17, 7, s{sT0}
            v_min_u32 v17, L_end - {NAME}_kernel, v17
            s_sub_u32 s90, s90, L_pc - {NAME}_kernel
            s_subb_u32 s91, s91, 0
            v_mov_b32 v19, s91
            v_add_co_u32 v18, vcc, s90, v17
            v_addc_co_u32 v19, vcc, 0, v19, vcc
            """)
            e.vmem("global_load_dword v28, v[18:19], off", 'code')
        e(f"""
        v_and_b32 v21, 3, v1
        v_mul_u32_u24 v22, 260, v21
        v_add_u32 v22, {FULLA}, v22
        s_lshl_b32 s{sT0}, s{sWL}, 8
        s_add_u32 s{sT0}, s{sT0}, {FREEA}
        v_lshl_add_u32 v23, v1, 2, s{sT0}
        s_mov_b32 m0, s{sT0}
        v_add_u32 v23, {FREEB - FREEA}, v23

        s_lshl_b32 s{sOWN}, s{sKG}, 2
        s_add_u32 s{sOWN}, s{sOWN}, s{sHP}
        s_lshl_b32 s{sOWN}, s{sOWN}, 7
        s_lshl_b32 s{sT0}, s{sT2}, 17
        s_lshl_b32 s{sT1}, s{sKG}, 15
        s_add_u32 s{sT0}, s{sT0}, s{sT1}
        s_add_u32 s{sT0}, s{sT0}, {c.ws_o}
        """)
        srd(e, R0, pWS, sT0, 32768)
        e(f"""
        s_lshl_b32 s{sT0}, s{sT2}, 2
        s_add_u32 s{sT0}, s{sT0}, s{sHP}
        s_lshl_b32 s{sT0}, s{sT0}, 16
        s_add_u32 s{sT0}, s{sT0}, {c.ws_p}
        """)
        srd(e, R3, pWS, sT0, 65536)
        e(f"""
        s_mul_i32 s{sT0}, s{sB}, 73728
        s_mul_i32 s{sT1}, s{sBLK}, 1152
        s_add_u32 s{sT0}, s{sT0}, s{sT1}
        s_sub_u32 s{sT1}, 2359296, s{sT0}
        """)
        srd(e, R4, pOUT, sT0, f"s{sT1}")
        if c.tlbpf:
            e(f"s_mul_i32 s{sT0}, s{sKG}, 20480\ns_mov_b32 s{sT1}, 7936")
            e.vmem(f"buffer_load_dword v29, off, {S(R0)}, s{sT1} sc1")
            e.vmem(f"buffer_load_dword v30, off, {S(R3)}, s{sT0} sc1")
            if c.tlbpf > 1: e.vmem(f"buffer_load_dword v31, off, {S(R4)}, 0 nt")
        e.vmem(f"buffer_load_dword v14, off, {S(R2)}, 0 sc1", 'epoch')
        e(f"""
        v_lshrrev_b32 v17, 4, v1
        v_and_b32 v18, 15, v1
        v_bfe_u32 v19, v1, 2, 2
        v_lshlrev_b32 v19, 6, v19
        v_and_b32 v20, 1, v17
        v_lshl_add_u32 v19, v20, 5, v19
        v_lshl_add_u32 v19, v21, 3, v19
        v_lshl_add_u32 v2, v17, 11, v19
        v_lshrrev_b32 v19, 5, v1
        v_lshlrev_b32 v19, 9, v19
        v_lshl_add_u32 v3, v16, 3, v19
        v_lshrrev_b32 v19, 1, v18
        v_xor_b32 v19, v19, v17
        v_lshlrev_b32 v19, 4, v19
        v_lshl_add_u32 v19, v18, 7, v19
        s_lshl_b32 s{sT0}, s{sWL}, 12
        v_add_u32 v6, s{sT0}, v19
        v_lshrrev_b32 v19, 1, v17
        v_xor_b32 v19, v19, v18
        v_lshlrev_b32 v19, 4, v19
        v_lshl_add_u32 v19, v18, 8, v19
        v_lshl_add_u32 v19, v20, 3, v19
        s_lshl_b32 s{sT0}, s{sWL}, 13
        s_add_u32 s{sKB}, s{sT0}, {KR}
        s_add_u32 s{sVB}, s{sT0}, {VR}
        v_add_u32 v9, s{sKB}, v19
        v_add_u32 v12, {VH[0]}, v6
        v_lshlrev_b32 v10, 4, v1
        v_lshlrev_b32 v11, 2, v1
        v_add_u32 v11, 4096, v11
        s_mov_b32 s{sC}, 0x3e0293ee
        """)
        for a in range(4): e(f"s_add_u32 s{sT0}, s{sHP}, {a}\ns_and_b32 s{sT0}, s{sT0}, 3\ns_lshl_b32 s{sH + a}, s{sT0}, 13")

        def fread(): e.ds("ds_read_b32 v21, v22", "full")
        def fcmp(val): e.wait(lg="full"); e(f"v_cmp_gt_u32 vcc, {val}, v21")
        def fbranch(val):
            if c.freerun and 1 < val <= 18: return
            u = self.U()
            e(f"s_cbranch_vccnz L_cs{u}\nL_co{u}:")
            self.ool.append(f"""
            L_cs{u}:
            s_mov_b32 s{sSPIN}, 0
            L_cl{u}:
            ds_read_b32 v21, v22
            s_add_u32 s{sSPIN}, s{sSPIN}, 1
            s_cmp_lt_u32 s{sSPIN}, 0x100000
            s_waitcnt lgkmcnt(0)
            s_cbranch_scc0 L_co{u}
            v_cmp_gt_u32 vcc, {val}, v21
            s_cbranch_vccnz L_cl{u}
            s_branch L_co{u}
            """)
        def fcheck(val): fcmp(val); fbranch(val)
        def ffree(val): e(f"v_mov_b32 v20, {val}"); e.ds("ds_write_b32 v23, v20")
        FREE_DMA = ("v", f"buffer_load_dword off, {S(R5)}, s{sFV} lds", None)
        def emit_op(op):
            if op[0] == 's': e(op[1])
            elif op[0] == 'v': e.vmem(op[1], op[2])
            elif op[0] == 'd': e.ds(op[1], op[2])
            else: op[1]()
        fixed = {}
        def fx(pos, op):
            assert pos not in fixed, pos
            fixed[pos] = [op] if op else []

        def qread(g, jj):
            j, a = g >> 4, g & 15
            base = WS_[j % 6]; hi = base >= 64*KB
            e.ds(f"ds_read_b64_tr_b16 {vr(FA + 4*(g & 7) + 2*jj, 2)}, v{(16 if hi else 4) + (a & 1)} offset:{base - hi*64*KB + (a >> 3)*8192 + jj*1024 + ((a & 7) >> 1)*256}", f"a{g}")
        def xread_op(j, rt):
            base = XS_[(j >> 1) % 3]; hi = base >= 96*KB
            return ("d", f"ds_read_b128 {vr(FB + 8*(j & 1) + 4*rt)}, v{[[7, 18], [24, 26]][rt][hi] + (j & 1)} offset:{base - hi*96*KB}", f"x{j}")
        e(f"""
        v_mov_b32 v4, v2
        v_xor_b32 v5, 32, v2
        v_add_u32 v16, {64*KB}, v4
        v_add_u32 v17, {64*KB}, v5
        s_and_b32 s{sT0}, s{sKG}, 1
        s_lshl_b32 s{sT0}, s{sT0}, 11
        v_xor_b32 v7, s{sT0}, v6
        v_xor_b32 v8, 64, v7
        v_add_u32 v18, {96*KB}, v7
        v_add_u32 v19, {96*KB}, v8
        v_xor_b32 v24, 0x800, v7
        v_xor_b32 v25, 0x800, v8
        v_xor_b32 v26, 0x800, v18
        v_xor_b32 v27, 0x800, v19
        """)
        fread(); fcheck(1)
        self.pt('hs0')
        emit_op(xread_op(0, 0)); emit_op(xread_op(0, 1))
        for g in range(D): qread(g, 0); qread(g, 1)
        offs = [o * c.sstep for o in range(c.nstag)]
        free_odd = {b + o for b in c.bursts + ([c.t0_at, c.t1_at or 0] if c.t0_at is not None else []) for o in offs} | {c.wo0_at} | ({x for r in c.sched for x in r} if c.sched else set())
        for p in range(1, 19):
            gB = 16*p - D
            if p >= c.free_ds:
                fx(2*(gB - 4), ("s", f"v_mov_b32 v20, {p}")); fx(2*(gB + 1), ("d", "ds_write_b32 v23, v20", None))
            elif p % 2 == 0 or p in free_odd or c.x_relax % 2:
                fx(2*(gB - 4), ("s", f"s_mov_b32 s{sFV}, {4*p}")); fx(2*(gB + c.free_pos), FREE_DMA)
            if p < 18:
                fx(2*(gB - 8), ("f", fread))
                fx(2*gB - 2, ("f", lambda p=p: fcmp(p + 1)))
                fx(2*gB, ("f", lambda p=p: (fbranch(p + 1), self.pt(f'hs{p}'))))
                fx(2*(gB + 2), xread_op(p, 0)); fx(2*(gB + 3), xread_op(p, 1))
        fx(41, ("f", lambda: (e.wait(vm='epoch'), e(f"v_readfirstlane_b32 s{sE}, v14"))))
        for g in range(288):
            j, a = g >> 4, g & 15
            for rt in range(2):
                if rt == 0 and a == 0: e.wait(lg=f"x{j}")
                if rt == 0 and g % 2 == 0: e.wait(lg=f"a{g + 1}")
                acc = vr(ACC + (2*a + rt)*4)
                e(f"{MF} {acc}, {vr(FA + 4*(g & 7))}, {vr(FB + 8*(j & 1) + 4*rt)}, {acc if j else 0}")
                for op in fixed.get(2*g + rt, []): emit_op(op)
                if g + D < 288: qread(g + D, rt)
        self.pt('qpend')
        QB = [32, 96]
        def qcvt(r, e=e):
            for s in range(4):
                for rt in range(2):
                    for u in range(2):
                        for q in range(2):
                            src = ACC + 64*r + 16*s + 8*u + 4*rt + 2*q
                            e(f"v_cvt_pk_bf16_f32 v{QB[r] + 8*s + 4*rt + 2*u + q}, v{src}, v{src+1}")
        SX, TM, PR, KF = [64, 128], [88, 152], 192, [FA, 208]
        fread()
        for k in range(8): e(f"v_xor_b32 v{24+k}, {32*k}, v9" if k else "v_mov_b32 v24, v9")
        qcvt(0)
        tail = f"""s_add_u32 s{sTAG}, s{sE}, 3
        s_lshl_b32 s{sT2}, s{sKG}, 12
        s_lshl_b32 s{sU}, s{sKG}, 14"""
        for Tp in range(1, 4):
            tail += f"""
        s_xor_b32 s{sT0}, s{sKG}, {Tp}
        s_lshl_b32 s{sT1}, s{sT0}, 14
        s_add_u32 s{sSND + Tp}, s{sT1}, s{sT2}
        s_lshl_b32 s{sT1}, s{sT0}, 12
        s_add_u32 s{sH + 4 + Tp}, s{sT1}, s{sU}"""
        tail += f"""
        s_mov_b32 s{sT2}, s{sU}
        s_bitcmp1_b32 s{sKG}, 1
        s_cselect_b64 s[{sM1}:{sM1+1}], -1, 0
        s_mov_b32 s{sM0}, 0x00ff00ff
        s_mov_b32 s{sM0+1}, 0x00ff00ff
        s_and_b32 s{sT0}, s{sKG}, 1
        s_mul_i32 s{sT0}, s{sT0}, 36864
        s_lshr_b32 s{sT1}, s{sKG}, 1
        s_lshl_b32 s{sU}, s{sT1}, 7
        s_add_u32 s{sU}, s{sU}, s{sT0}
        s_mul_i32 s{sT1}, s{sT1}, 18432
        s_add_u32 s{sT0}, s{sT0}, s{sT1}
        s_lshl_b32 s{sT1}, s{sHP}, 8
        s_add_u32 s{sU}, s{sU}, s{sT1}
        s_lshl_b32 s{sT1}, s{sHP}, 5
        s_add_u32 s{sT0}, s{sT0}, s{sT1}
        s_add_u32 s{sSND}, s{sT0}, 1024
        v_and_b32 v7, 15, v1
        v_mul_u32_u24 v7, 2304, v7
        v_bfe_u32 v8, v1, 4, 1
        v_lshl_add_u32 v7, v8, 5, v7
        v_lshrrev_b32 v8, 5, v1
        v_lshl_add_u32 v7, v8, 4, v7
        v_and_b32 v6, 7, v1
        v_mul_u32_u24 v6, 2304, v6
        v_lshrrev_b32 v8, 4, v1
        v_lshl_add_u32 v6, v8, 3, v6
        v_bfe_u32 v8, v1, 3, 1
        v_lshl_add_u32 v6, v8, 2, v6
        v_and_b32 v8, 3, v1
        v_min_u32 v8, 2, v8
        v_add_u32 v8, 1, v8
        v_xor_b32 v8, s{sKG}, v8
        v_lshlrev_b32 v8, 12, v8
        v_add_u32 v8, {c.lp_unit*1024 + 1020}, v8"""
        e(tail)
        fcheck(19)
        self.pt('Kok')
        def kreads(r):
            for s in range(4):
                for kt in range(2):
                    for hf in range(2):
                        e.ds(f"ds_read_b64 {vr(KF[r] + 8*s + 4*kt + 2*hf, 2)}, v{24 + 2*s + hf} offset:{(VR - KR)*r + kt*4096}", f"k{r}{s}{kt}")
        kreads(0)
        fread()
        C1 = []; qcvt(1, C1.append)
        def smfma(r):
            L = []
            for s in range(4):
                for kt in range(2):
                    for rt in range(2):
                        acc = vr(SX[r] + 8*kt + 4*rt)
                        L.append((f"k{r}{s}{kt}", f"{MF} {acc}, {vr(KF[r] + 8*s + 4*kt)}, {vr(QB[r] + 8*s + 4*rt)}, {acc if s else 0}"))
            return L
        def softmax(r):
            Sx, TMP = SX[r], TM[r]
            t0, t1, t2, t3 = TMP, TMP+1, TMP+2, TMP+3
            def val(rt, i): return Sx + 8*(i >> 2) + 4*rt + (i & 3)
            L = []
            for rt in range(2):
                t = TMP + 2*rt
                L += [f"v_max3_f32 v{t}, v{val(rt,0)}, v{val(rt,1)}, v{val(rt,2)}", f"v_max3_f32 v{t+1}, v{val(rt,3)}, v{val(rt,4)}, v{val(rt,5)}"]
            for rt in range(2): L.append(f"v_max3_f32 v{TMP + 2*rt}, v{TMP + 2*rt}, v{val(rt,6)}, v{val(rt,7)}")
            for rt in range(2): L.append(f"v_max_f32 v{TMP + 2*rt}, v{TMP + 2*rt}, v{TMP + 2*rt + 1}")
            xred = lambda op: [f"v_permlane32_swap_b32 v{t0}, v{t2}", f"{op} v{t0}, v{t0}, v{t2}", f"v_mov_b32 v{t1}, v{t0}",
                               f"v_permlane16_swap_b32 v{t0}, v{t1}", f"{op} v{t0}, v{t0}, v{t1}"]
            L += xred("v_max_f32")
            L += [f"v_mul_f32 v{t0}, s{sC}, v{t0}", f"v_mov_b32 v{t2}, v{t0}", f"v_permlane32_swap_b32 v{t0}, v{t2}"]
            for rt in range(2):
                if c.pkfma: L += [f"v_pk_fma_f32 {vr(val(rt,i), 2)}, {vr(val(rt,i), 2)}, s[{sC}:{sC+1}], {vr(TMP + 2*rt, 2)} op_sel_hi:[1,0,0] neg_lo:[0,0,1] neg_hi:[0,0,1]" for i in range(0, 8, 2)]
                else: L += [f"v_fma_f32 v{val(rt,i)}, v{val(rt,i)}, s{sC}, -v{TMP + 2*rt}" for i in range(8)]
            for rt in range(2): L += [f"v_exp_f32 v{val(rt,i)}, v{val(rt,i)}" for i in range(8)]
            for rt in range(2): L.append(f"v_pk_add_f32 {vr(TMP + 2*rt, 2)}, {vr(val(rt,0), 2)}, {vr(val(rt,2), 2)}")
            for k in (4, 6):
                for rt in range(2): L.append(f"v_pk_add_f32 {vr(TMP + 2*rt, 2)}, {vr(TMP + 2*rt, 2)}, {vr(val(rt,k), 2)}")
            L += [f"v_add_f32 v{t0}, v{t0}, v{t1}", f"v_add_f32 v{t2}, v{t2}, v{t3}"]
            L += xred("v_add_f32")
            L += [f"v_rcp_f32 v{t0}, v{t0}", f"v_mov_b32 v{t2}, v{t0}", f"v_permlane32_swap_b32 v{t0}, v{t2}"]
            for rt in range(2):
                L += [f"v_pk_mul_f32 {vr(val(rt,i), 2)}, {vr(val(rt,i), 2)}, {vr(TMP + 2*rt, 2)} op_sel_hi:[1,0]" for i in range(0, 8, 2)]
            for rt in range(2):
                L += [f"v_cvt_pk_bf16_f32 v{PR + 8*r + 4*rt + q}, v{val(rt,2*q)}, v{val(rt,2*q+1)}" for q in range(4)]
                L.append(f"buffer_store_dwordx4 {vr(PR + 8*r + 4*rt)}, v10, {S(R0)}, s{sH} offen offset:{(2*r + rt)*1024} sc1")
            return L
        def put(x): e.vmem(x, "pst") if x.startswith("buffer") else e(x)
        for n, (tag, m) in enumerate(smfma(0)):
            e.wait(lg=tag); e(m)
            e(C1.pop(0)); e(C1.pop(0))
            if n == 7:
                fcheck(20); self.pt('K1ok'); kreads(1); ffree(20)
        A, B = softmax(0), softmax(1)
        for n, (tag, m) in enumerate(smfma(1)):
            e.wait(lg=tag); e(m)
            if n >= 3 and len(A) > 30: put(A.pop(0)); put(A.pop(0))
        fread()
        while A or B:
            if B: put(B.pop(0))
            if A: put(A.pop(0))
        def xorall(dst, base, init, tmp=(26, 27, 9)):
            t = [dst] + list(tmp)
            ops = [f"v_bitop3_b32 v{t[0]}, v{base}, v{base + 4}, {init} bitop3:0x96"]
            ops += [f"v_bitop3_b32 v{t[i]}, v{base + i}, v{base + 4 + i}, v{base + 8 + i} bitop3:0x96" for i in range(1, 4)]
            ops += [f"v_bitop3_b32 v{t[0]}, v{base + 8}, v{base + 12}, v{t[0]} bitop3:0x96"]
            ops += [f"v_xor_b32 v{t[i]}, v{base + 12 + i}, v{t[i]}" for i in range(1, 4)]
            ops += [f"v_alignbit_b32 v{t[i]}, v{t[i]}, v{t[i]}, {5*i}" for i in range(1, 4)]
            ops += [f"v_bitop3_b32 v{t[0]}, v{t[1]}, v{t[2]}, v{t[0]} bitop3:0x96", f"v_xor_b32 v{t[0]}, v{t[3]}, v{t[0]}"]
            return ops
        for x in xorall(15, PR, f"s{sTAG}", (88, 89, 90)): e(x)
        e.vmem(f"buffer_store_dword v15, v11, {S(R0)}, s{sH} offen sc1")
        self.pt('sm')

        PT = [32, 48, 64, 80]; NA = 96; VF = 104; VWA = 136; VWB = 152
        def PA(nt, rt): return (NA + 4*rt) if nt == 8 else PT[2*(nt >> 2) + rt] + 4*(nt & 3)
        STEP = [(hd, nt) for hd in range(6) for nt in NTO]
        STEP += [(6, nt) for nt in NTO[:5]] + [(7, nt) for nt in NTO] + [(6, nt) for nt in NTO[5:]] if c.early else [(hd, nt) for hd in (6, 7) for nt in NTO]
        START = [[h for h, _ in STEP].index(hd) for hd in range(8)]
        VS = [VF if hd % 2 == 0 else 224 for hd in range(8)]
        PB = lambda a: PR + 16*(a & 1)
        def pread(g, jj):
            (hd, nt), sg = STEP[g >> 2], g & 3
            base = WOS[hd % 3]
            if nt < 8:
                hi = base >= 64*KB
                a, off = (16 if hi else 4) + (nt & 1), base - hi*64*KB + sg*8192 + jj*1024 + (nt >> 1)*256
            else:
                a, off = 18, 4096*(hd % 3) + sg*1024 + jj*256
            e.ds(f"ds_read_b64_tr_b16 {vr(FA + 4*(g & 7) + 2*jj, 2)}, v{a} offset:{off}", f"a{g}")
        def vread(hd, sg, kt):
            e.ds(f"ds_read_b128 {vr(VS[hd] + 8*sg + 4*kt)}, v{24 + (sg & 1)} offset:{vslot(hd, sg >> 1) - VH[0] + kt*2048}", f"vf{hd}_{sg}")
        e(f"v_mov_b32 v24, v12\nv_xor_b32 v25, 64, v12\nv_add_u32 v18, {W9}, v3")
        fcheck(21)
        self.pt('h0')
        for sg in range(4): vread(0, sg, 0); vread(0, sg, 1)
        for g in range(D): pread(g, 0); pread(g, 1)
        if not c.safebar: e("s_barrier")
        fixed.clear(); soft = {}
        def at(N, ops): soft.setdefault(N, []).extend(ops)
        if c.safebar: fx((0, 0), ("f", lambda: (e.wait(lg="vf0_3"), e("s_barrier"))))
        for hd in range(1, 8):
            N = START[hd]
            assert D == 6
            if hd == 6 and c.early: N -= c.early
            fx((N - 3, 3), ("d", "ds_read_b32 v21, v22", "full"))
            if hd in c.late and hd > 1:
                fx((N - 2, 3), ("f", lambda hd=hd: fcmp(20 + 2*hd)))
                fx((N - 2, 4), ("f", lambda hd=hd: (fbranch(20 + 2*hd), self.pt(f'h{hd}'))))
                fx((N - 2, 6), ("d", "ds_read_b32 v21, v22", "full"))
                fx((N - 1, 0), ("f", lambda hd=hd: fcmp(21 + 2*hd)))
                fx((N - 1, 1), ("f", lambda hd=hd: (fbranch(21 + 2*hd), self.pt(f'v{hd}'))))
                for k, sl in enumerate((3, 4, 5, 6)):
                    fx((N - 1, sl), ("f", lambda hd=hd, k=k: (vread(hd, k, 0), vread(hd, k, 1))))
                bp = (N, 3)
            else:
                fx((N - 2, c.chk), ("f", lambda hd=hd: fcmp(21 + 2*hd)))
                fx((N - 2, c.chk + 1), ("f", lambda hd=hd: (fbranch(21 + 2*hd), self.pt(f'h{hd}'))))
                vp = [(N - 2, 3), (N - 2, 5), (N - 2, 6), (N - 2, 8), (N - 1, 0), (N - 1, 1), (N - 1, 3), (N - 1, 5), (N - 1, 6)]
                for k, pos in enumerate(vp[:8] if c.chk == 0 else vp[1:]):
                    fx(pos, ("f", lambda hd=hd, k=k: vread(hd, k >> 1, k & 1)))
                bp = (N - 1, 8) if c.chk == 0 else (N, 0)
            if hd < 7: fx(bp, ("f", lambda hd=hd: (e.wait(lg=f"vf{hd}_3"), e("s_barrier"), self.pt(f'b{hd}'))))
        def ploads(a):
            return [f"buffer_load_dwordx4 {vr(PB(a) + 4*k)}, v10, {S(R0)}, s{sH + a} offen offset:{k*1024} sc1" for k in range(4)] + \
                   [f"buffer_load_dword v14, v11, {S(R0)}, s{sH + a} offen sc1"]
        def pcheck(a):
            ops = xorall(14, PB(a), "v14")
            L = [("f", lambda: (self.pt(f'c{a}q'), e.wait(vm=f"P{a}"), e(ops[0])))] + [("s", x) for x in ops[1:]]
            L.append(("f", lambda: (e(f"v_cmp_ne_u32 vcc, s{sTAG}, v14\ns_cbranch_vccnz L_p_spin{a}\nL_p_ok{a}:"), self.pt(f'c{a}'))))
            nl = "\n"
            self.ool.append(f"""
            L_p_spin{a}:
            s_mov_b32 s{sSPIN}, 0
            L_p_lp{a}:
            {nl.join(ploads(a))}
            s_add_u32 s{sSPIN}, s{sSPIN}, 1
            s_cmp_lt_u32 s{sSPIN}, 0x10000
            s_waitcnt vmcnt(0)
            s_cbranch_scc0 L_p_ok{a}
            {nl.join(ops)}
            v_cmp_ne_u32 vcc, s{sTAG}, v14
            s_cbranch_vccnz L_p_lp{a}
            s_branch L_p_ok{a}
            """)
            return L
        for a in range(1, 4):
            at(c.pl_at[a - 1], [("v", x, f"P{a}") for x in ploads(a)])
            assert c.pl_at[a - 1] < c.pc_at[a - 1] <= 18*a - 1 and (a == 1 or c.pl_at[a - 1] > max(c.pc_at[a - 2] + 2, 18*a - 16))
            at(c.pc_at[a - 1], pcheck(a))
        NF = 28
        nin = []
        for rt in range(2):
            a = NA + 4*rt
            nin += [f"v_cvt_pk_bf16_f32 v{a}, v{a}, v{a+1}", f"v_cvt_pk_bf16_f32 v{a+1}, v{a+2}, v{a+3}"]
        for rt in range(2):
            a = NA + 4*rt
            nin += [f"v_mov_b32_dpp v{a+2}, v{a} row_ror:8 row_mask:0xf bank_mask:0xf", f"v_mov_b32_dpp v{a+3}, v{a+1} row_ror:8 row_mask:0xf bank_mask:0xf"]
        for rt in range(2):
            a = NA + 4*rt
            nin += [f"v_cndmask_b32 v{a}, v{a+3}, v{a}, s[{sM0}:{sM0+1}]", f"v_cndmask_b32 v{a+1}, v{a+1}, v{a+2}, s[{sM0}:{sM0+1}]"]
        for rt in range(2):
            a = NA + 4*rt
            nin += [f"v_cndmask_b32 v{NF + rt}, v{a}, v{a+1}, s[{sM1}:{sM1+1}]", f"v_cndmask_b32 v{NF + 2 + rt}, v{a+1}, v{a}, s[{sM1}:{sM1+1}]"]
        E0 = 4 if c.early else 0
        at(66 - E0, [("s", x) for x in nin])
        def send(Tp, k):
            d = PT[Tp]
            ops = [("s", f"v_cvt_pk_bf16_f32 v{d + i + k}, v{d + 2*i}, v{d + 2*i + 1}") for i in range(3*k, min(3*k + 3, 8))]
            if k == 2: ops.append(("s", f"v_mov_b32 v{d + 10}, v{NF + Tp}"))
            ops.append(("s", f"v_mov_b32 v{d + 4*k + 3}, s{sTAG}"))
            if not (c.x_nounit0 and k == 0): ops.append(("v", f"buffer_store_dwordx4 {vr(d + 4*k)}, v10, {S(R3)}, s{sSND + Tp} offen offset:{1024*k} sc1", None))
            return ops
        for k in range(3):
            at(68 - E0 + k, send(2, k) + send(3, k))
            at(72 + k, send(1, k))
        q = []
        def s2(N, rt):
            hd, nt = STEP[N]
            if hd >= 2 and hd % 2 == 0 and N == START[hd]: assert not q, "P check still queued"
            acc = vr(PA(nt, rt))
            e(f"{MF} {acc}, {vr(VWB + 4*(N & 1))}, {vr(PB(hd >> 1) + 8*(hd & 1) + 4*rt)}, {acc if hd else 0}")
        def cvt(N, k): e(f"v_cvt_pk_bf16_f32 v{VWB + 4*(N & 1) + k}, v{VWA + 8*(N & 1) + 2*k}, v{VWA + 8*(N & 1) + 2*k + 1}")
        ORD = ['M0', 'M1', 'Sa', 'M2', 'M3', 'M4', 'M5', 'Sb', 'M6', 'M7']
        for N in range(74):
            hd = STEP[min(N, 71)][0]
            q += soft.get(N, [])
            for slot, nm in enumerate(ORD):
                used = 0
                if nm[0] == 'S':
                    rt = int(nm == 'Sb')
                    if N >= 2: s2(N - 2, rt)
                    if 1 <= N <= 72: cvt(N - 1, 2*rt); cvt(N - 1, 2*rt + 1); used += 2
                elif N < 72:
                    m = int(nm[1]); g, kt = 4*N + (m >> 1), m & 1
                    if N == START[hd] and kt == 0: e.wait(lg=f"vf{hd}_{g & 3}")
                    if m in (0, 4): e.wait(lg=f"a{g + 1}")
                    acc = vr(VWA + 8*(N & 1) + 4*kt)
                    e(f"{MF} {acc}, {vr(VS[hd] + 8*(g & 3) + 4*kt)}, {vr(FA + 4*(g & 7))}, {acc if g & 3 else 0}")
                    for op in fixed.get((N, slot), []): emit_op(op); used += 1
                    if g + D < 288: pread(g + D, kt); used += 1
                    if m in (3, 7): used += 1
                else: continue
                while used < 2 and q:
                    emit_op(q.pop(0)); used += 1
        self.pt('p2end')
        for op in q + soft[74]: emit_op(op)
        RB = 104
        e(f"s_mov_b32 s{sSPIN}, 0")
        if c.pts and 'ack' in c.pts: e("s_waitcnt vmcnt(0)"); self.pt('ack')
        T = 144
        def fetch(name, msgs, light):
            e(f"L_{name}_lp:")
            if light:
                e(f"""
                buffer_load_dword v9, v{light}, {S(R3)}, s{sT2} offen sc1
                s_add_u32 s{sSPIN}, s{sSPIN}, 1
                s_cmp_lt_u32 s{sSPIN}, 0x10000
                s_waitcnt vmcnt(0)
                s_cbranch_scc0 L_{name}_full
                v_cmp_ne_u32 vcc, s{sTAG}, v9
                s_cbranch_vccnz L_{name}_lp
                L_{name}_full:
                """)
            else: e(f"s_add_u32 s{sSPIN}, s{sSPIN}, 1")
            us = [RB + 12*(a - 1) + 4*k for a in msgs for k in range(3)]
            for a in msgs:
                for k in range(3): e(f"buffer_load_dwordx4 {vr(RB + 12*(a - 1) + 4*k)}, v10, {S(R3)}, s{sH + 4 + a} offen offset:{1024*k} sc1")
            for n, u in enumerate(us):
                e(f"s_waitcnt vmcnt({len(us) - 1 - n})")
                e(f"v_xor_b32 v9, s{sTAG}, v{u + 3}" if n == 0 else f"v_bitop3_b32 v9, v{u + 3}, s{sTAG}, v9 bitop3:0xbe")
            e(f"""
            v_cmp_ne_u32 vcc, 0, v9
            s_cmp_lt_u32 s{sSPIN}, 0x10000
            s_cbranch_scc0 L_{name}_ok
            s_cbranch_vccnz L_{name}_lp
            L_{name}_ok:
            """)
        def add(a):
            for hf in range(2):
                for i in range(4*hf, 4*hf + 4):
                    d = RB + 12*(a - 1) + i + i // 3
                    e(f"v_lshlrev_b32 v{T + 2*(i&3)}, 16, v{d}\nv_and_b32 v{T + 1 + 2*(i&3)}, s{sT0}, v{d}")
                for i in range(4*hf, 4*hf + 4):
                    e(f"v_pk_add_f32 {vr(PT[0] + 2*i, 2)}, {vr(PT[0] + 2*i, 2)}, {vr(T + 2*(i&3), 2)}")
            d = RB + 12*(a - 1) + 10
            e(f"v_lshlrev_b32 v{T}, 16, v{d}\nv_and_b32 v{T + 1}, s{sT0}, v{d}\nv_pk_add_f32 v[100:101], v[100:101], {vr(T, 2)}")
        e(f"s_mov_b32 s{sT0}, 0xffff0000\nv_lshlrev_b32 v100, 16, v{NF}\nv_and_b32 v101, s{sT0}, v{NF}")
        if c.fin == 'light':
            fetch("fa", [1, 2, 3], 8); self.pt('cf')
            add(2); add(3)
        else:
            e(f"v_and_b32 v4, 1, v1\nv_add_u32 v4, 2, v4\nv_xor_b32 v4, s{sKG}, v4\nv_lshlrev_b32 v4, 12, v4\nv_add_u32 v4, {2048 + 1020}, v4")
            e(f"s_xor_b32 s{sT1}, s{sKG}, 1\ns_lshl_b32 s{sT1}, s{sT1}, 12\ns_add_u32 s{sT1}, s{sT1}, {2048 + 1020}\nv_mov_b32 v5, s{sT1}")
            fetch("fa", [2, 3], 4 if c.fin[0] == 'l' else None); self.pt('lp')
            if c.fin[1] == 'f':
                for k in range(3): e(f"buffer_load_dwordx4 {vr(RB + 4*k)}, v10, {S(R3)}, s{sH + 5} offen offset:{1024*k} sc1")
            add(2); add(3)
            if c.fin[1] == 'f':
                e(f"""
                s_waitcnt vmcnt(0)
                v_xor_b32 v9, s{sTAG}, v{RB + 3}
                v_bitop3_b32 v9, v{RB + 7}, s{sTAG}, v9 bitop3:0xbe
                v_bitop3_b32 v9, v{RB + 11}, s{sTAG}, v9 bitop3:0xbe
                v_cmp_ne_u32 vcc, 0, v9
                s_cbranch_vccz L_fb_ok
                """)
            fetch("fb", [1], 5 if c.fin[2] == 'l' else None); self.pt('cf')
        e(f"""
        s_cmp_eq_u32 s{sOWN}, 0
        s_cbranch_scc0 L_noep
        s_add_u32 s{sT1}, s{sE}, 4
        v_mov_b32 v15, s{sT1}
        buffer_store_dword v15, v13, {S(R2)}, 0 offen sc1
        L_noep:
        """)
        add(1)
        for i in range(8): e(f"v_cvt_pk_bf16_f32 v{T + i}, v{PT[0] + 2*i}, v{PT[0] + 2*i + 1}")
        e("v_cvt_pk_bf16_f32 v100, v100, v101")
        for u in range(2):
            for q in range(2): e(f"v_permlane16_swap_b32 v{T + 4*u + q}, v{T + 4*u + 2 + q}")
        if c.noout < 1: e(f"buffer_store_dword v100, v6, {S(R4)}, s{sSND} offen {c.pol_out}")
        for u in range(2):
            if c.noout < 2: e(f"buffer_store_dwordx4 {vr(T + 4*u)}, v7, {S(R4)}, s{sU} offen offset:{64*u} {c.pol_out}")
        self.pt('end')
        self.dump(False)
        if c.padfrom:
            e("""
            L_pad:
            s_memrealtime s[50:51]
            s_waitcnt lgkmcnt(0)
            s_sub_u32 s50, s50, s54
            s_cmp_lt_u32 s50, 3000
            s_cbranch_scc1 L_pad
            """)
        e("s_endpgm")
        for b in self.ool: e(b)

    def build(self):
        self.entry(); self.helper(); self.compute()
        self.e("L_end:\ns_endpgm")
        lines, added = insert_nops(self.e.L)
        hdr = open("cdna_kernels/" + NAME + ".s.ref").read().split("\n")
        top = [l for l in hdr if l.startswith(";") and "@launch" not in l]
        out = "\n".join(top) + f"\n; @launch grid=(256,1,1) block=(512,1,1) lds={LDS_BYTES}\n"
        if self.c.pts: out += "; PTS " + " ".join(self.ptorder) + "\n"
        if self.c.trace is not None: out += "; TRC " + " ".join(self.names) + "\n"
        out += f""".amdgcn_target "amdgcn-amd-amdhsa--gfx950"
.text
.globl {NAME}_kernel
.p2align 8
.type {NAME}_kernel,@function
{NAME}_kernel:
"""
        out += "\n".join((l if l.endswith(":") else "    " + l) for l in lines)
        out += f"""
.section .rodata,"a"
.p2align 6
.amdhsa_kernel {NAME}_kernel
  .amdhsa_next_free_vgpr 256
  .amdhsa_next_free_sgpr 102
  .amdhsa_accum_offset 256
  .amdhsa_group_segment_fixed_size 0
  .amdhsa_kernarg_size 104
  .amdhsa_user_sgpr_count 2
  .amdhsa_user_sgpr_kernarg_segment_ptr 1
  .amdhsa_system_sgpr_workgroup_id_x 1
.end_amdhsa_kernel
"""
        return out, added

def make(path, **kw):
    cfg = Cfg()
    for k, v in kw.items():
        assert hasattr(cfg, k), k
        setattr(cfg, k, v)
    txt, added = G(cfg).build()
    open(path, "w").write(txt)
    return added

if __name__ == "__main__":
    print("nops added", make("cdna_kernels/" + NAME + ".s"))
```
